```python
import torch

def _softmax(x, axis=-1):
    return torch.softmax(x, dim=axis)
def _gelu(x):
    return torch.nn.functional.gelu(x, approximate="tanh")
def _silu(x):
    return torch.nn.functional.silu(x)
def _sigmoid(x):
    return torch.sigmoid(x)
def _layernorm(x, axis=-1, eps=1e-5):
    m = x.mean(dim=axis, keepdim=True)
    v = x.var(dim=axis, keepdim=True, unbiased=False)
    return (x - m) / torch.sqrt(v + eps)
def _scatter_add(tgt, idx, src, axis=0):
    return tgt.clone().index_add_(axis, idx, src)
def _segment_sum(src, seg, n):
    out = torch.zeros((n,) + src.shape[1:], dtype=src.dtype)
    return out.index_add_(0, seg, src)
def _pad(x, pw):
    flat = tuple(v for pair in reversed(pw) for v in pair)
    return torch.nn.functional.pad(x, flat)

kernel_name = 'concat_heads__gqa_block_cached__mha_block_cached__decode'

def setup_inputs():

    _w = (lambda a: (lambda t: t.to(torch.bfloat16) if t.is_floating_point() else t)(torch.as_tensor(a)))
    def _A_setup():
        B, Sq, D = 8, 1, 448
        Hq, Hkv, Sk, Dh = 16, 8, 4096, 256
        assert Hq % Hkv == 0, (Hq, Hkv)
        return {
            "x": _w((lambda *s: torch.randn(*s, dtype=torch.bfloat16) * 0.8)(B, Sq, D)),
            "k_cache": _w((lambda *s: torch.randn(*s, dtype=torch.bfloat16) * 0.8)(B, Hkv, Sk, Dh)),
            "v_cache": _w((lambda *s: torch.randn(*s, dtype=torch.bfloat16) * 0.05)(B, Hkv, Sk, Dh)),
            "wq": _w((lambda *s: torch.randn(*s, dtype=torch.bfloat16) * 0.8)(D, Hq * Dh) * (D ** -0.5)),
            "wo": _w((lambda *s: torch.randn(*s, dtype=torch.bfloat16) * 0.05)(Hq * Dh, D) * ((Hq * Dh) ** -0.5)),
        }
    _A_in = _A_setup()

    def _B_setup():
        B, Sq, D = 8, 1, 448
        H, Sk, Dh = 16, 4096, 256
        return {
            "x": _w((lambda *s: torch.randn(*s, dtype=torch.bfloat16) * 0.8)(B, Sq, D)),
            "k_cache": _w((lambda *s: torch.randn(*s, dtype=torch.bfloat16) * 0.8)(B, H, Sk, Dh)),
            "v_cache": _w((lambda *s: torch.randn(*s, dtype=torch.bfloat16) * 0.05)(B, H, Sk, Dh)),
            "wq": _w((lambda *s: torch.randn(*s, dtype=torch.bfloat16) * 0.8)(D, H * Dh) * (D ** -0.5)),
            "wo": _w((lambda *s: torch.randn(*s, dtype=torch.bfloat16) * 0.05)(H * Dh, D) * ((H * Dh) ** -0.5)),
        }
    _B_in = _B_setup()

    return {
        "A_x": _A_in["x"],
        "A_k_cache": _A_in["k_cache"],
        "A_v_cache": _A_in["v_cache"],
        "A_wq": _A_in["wq"],
        "A_wo": _A_in["wo"],
        "B_x": _B_in["x"],
        "B_k_cache": _B_in["k_cache"],
        "B_v_cache": _B_in["v_cache"],
        "B_wq": _B_in["wq"],
        "B_wo": _B_in["wo"],
    }

def reference(A_x, A_k_cache, A_v_cache, A_wq, A_wo, B_x, B_k_cache, B_v_cache, B_wq, B_wo):
    def _A_ref(x, k_cache, v_cache, wq, wo):
        B, Sq, D = x.shape
        Hq, Dh = 16, 256
        Hkv = k_cache.shape[1]
        rep = Hq // Hkv
        q = (lambda x, *d: x.permute(*d))((x @ wq).reshape(B, Sq, Hq, Dh), 0, 2, 1, 3)
        k = (lambda x, n, axis: torch.repeat_interleave(x, n, dim=axis))(k_cache, rep, axis=1)
        v = (lambda x, n, axis: torch.repeat_interleave(x, n, dim=axis))(v_cache, rep, axis=1)
        scores = torch.einsum("bhqd,bhkd->bhqk", q, k) * (Dh ** -0.5)
        p = _softmax(scores, axis=-1)
        o = torch.einsum("bhqk,bhkd->bhqd", p, v)
        return (lambda x, *d: x.permute(*d))(o, 0, 2, 1, 3).reshape(B, Sq, Hq * Dh) @ wo

    def _B_ref(x, k_cache, v_cache, wq, wo):
        B, Sq, D = x.shape
        H, Dh = 16, 256
        q = (lambda x, *d: x.permute(*d))((x @ wq).reshape(B, Sq, H, Dh), 0, 2, 1, 3)
        scores = torch.einsum("bhqd,bhkd->bhqk", q, k_cache) * (Dh ** -0.5)
        p = _softmax(scores, axis=-1)
        o = torch.einsum("bhqk,bhkd->bhqd", p, v_cache)
        return (lambda x, *d: x.permute(*d))(o, 0, 2, 1, 3).reshape(B, Sq, H * Dh) @ wo

    a = _A_ref(A_x, A_k_cache, A_v_cache, A_wq, A_wo)
    b = _B_ref(B_x, B_k_cache, B_v_cache, B_wq, B_wo)
    return torch.concatenate([a, b], axis=-1)
```

```python
import sys
KN = "concat_heads__gqa_block_cached__mha_block_cached__decode_kernel"

HEADER = """; Fused decode attention (two problems: GQA 'A' and MHA 'B') for gfx950, one launch.
;   every wg, wave 0 : 32 columns of q = x @ wq for all 8 batches, published as 16-byte {4 x bf16, 64-bit epoch} granules
"""

class G:
    def __init__(self):
        self.l = []
    def __call__(self, s):
        self.l.append("  " + s)
    def label(self, s):
        self.l.append(s + ":")
    def c(self, s):
        self.l.append("  ; " + s)

def gen(stamps=0, spin=1 << 18, kflags="nt", vflags="nt", wqflags="nt", woflags="nt", sleep_q=1, sleep_o=4, mode="alt",
        prof=0, steptime=0, nact=4, prio=1, pace=0, qfirst=1, win=0):
    e = G()
    LDS_Q, LDS_TK, LDS_ST, LDS_QT, LDS_RED = 131072, 132096, 132128, 133120, 135168
    LDS_BYTES = 139264
    WS_EPOCH, WS_H, WS_REP, WS_QG, WS_O, WS_STAMP = 0, 0x1000, 0x2000, 0x10000, 0x60000, 0x20000000
    WS_PROG = 0x4000
    vPA, vPV = 244, 245
    NT = 128
    SCALE = 0x3DB8AA3B

    def stamp(idx):
        if not stamps: return
        e("s_memrealtime s[62:63]")
        e("s_waitcnt lgkmcnt(0)")
        e(f"v_writelane_b32 v254, s62, {idx}")
    def stamp_flush():
        if not stamps: return
        e("s_lshl_b32 s60, s2, 10")
        e("s_lshl_b32 s61, s3, 8")
        e("s_add_u32 s60, s60, s61")
        e(f"s_add_u32 s62, s28, {WS_STAMP}")
        e("s_addc_u32 s63, s29, 0")
        e("s_add_u32 s62, s62, s60")
        e("s_addc_u32 s63, s63, 0")
        e("v_mbcnt_lo_u32_b32 v253, -1, 0")
        e("v_mbcnt_hi_u32_b32 v253, -1, v253")
        e("v_lshlrev_b32 v253, 2, v253")
        e("global_store_dword v253, v254, s[62:63]")
    def pf(k):
        if not prof: return
        e("s_memtime s[64:65]")
        e("s_waitcnt lgkmcnt(0)")
        e("s_sub_u32 s66, s64, s67")
        e(f"s_add_u32 s{84+k}, s{84+k}, s66")
        e("s_mov_b32 s67, s64")

    e.l.append(HEADER.rstrip("\n"))
    e.l.append(f"; @launch grid=(256,1,1) block=(256,1,1) lds={LDS_BYTES}")
    e.l.append('.amdgcn_target "amdgcn-amd-amdhsa--gfx950"')
    e.l.append(".text")
    e.l.append(f".globl {KN}")
    e.l.append(".p2align 8")
    e.l.append(f".type {KN},@function")
    e.label(KN)
    e("s_cmp_ge_u32 s2, 256")
    e("s_cbranch_scc1 L_end")
    e("s_load_dwordx16 s[4:19], s[0:1], 0")
    e("s_load_dwordx8 s[20:27], s[0:1], 64")
    e("s_load_dwordx2 s[28:29], s[0:1], 96")
    if stamps:
        e("v_mov_b32 v254, 0")
    e("v_lshrrev_b32 v2, 6, v0")
    e("v_and_b32 v1, 63, v0")
    e("v_readfirstlane_b32 s3, v2")
    stamp(0)
    e("s_waitcnt lgkmcnt(0)")
    e("s_cmp_eq_u32 s3, 0")
    e("s_cbranch_scc1 L_qslice")
    e("s_cmp_lt_u32 s2, 64")
    e("s_cbranch_scc1 L_h_join0")
    e("s_branch L_unit_setup")

    XF, BQ = 48, 112
    T0, T1, T2, T3 = 240, 241, 242, 243
    e.label("L_qslice")
    if prio: e("s_setprio 3")
    e("s_and_b32 s40, s2, 7")
    e("s_lshl_b32 s40, s40, 5")
    e("s_lshr_b32 s41, s2, 3")
    e("s_add_u32 s40, s40, s41")
    e("s_lshr_b32 s80, s40, 7")
    e("s_and_b32 s81, s40, 127")
    e("s_cmp_eq_u32 s80, 0")
    e("s_cselect_b32 s72, s4, s14")
    e("s_cselect_b32 s73, s5, s15")
    e("s_cselect_b32 s76, s10, s20")
    e("s_cselect_b32 s77, s11, s21")
    e("s_and_b32 s73, s73, 0xffff")
    e("s_and_b32 s77, s77, 0xffff")
    e("s_mov_b32 s74, 7168")
    e("s_mov_b32 s75, 0x20000")
    e("s_mov_b32 s78, 3670016")
    e("s_mov_b32 s79, 0x20000")
    e("v_lshrrev_b32 v2, 2, v1")
    e("v_lshlrev_b32 v2, 13, v2")
    e("v_and_b32 v3, 3, v1")
    e("v_lshl_add_u32 v2, v3, 4, v2")
    e("s_lshl_b32 s41, s81, 6")
    for n in range(28):
        e(f"s_add_u32 s42, s41, {n*131072}")
        e(f"s_mov_b32 m0, {n*1024}")
        e("s_nop 0")
        e(f"buffer_load_dwordx4 v2, s[76:79], s42 offen {wqflags} lds")
    e("v_and_b32 v4, 7, v1")
    e("v_mul_u32_u24 v4, 896, v4")
    e("v_lshrrev_b32 v5, 4, v1")
    e("v_lshl_add_u32 v4, v5, 4, v4")
    for ks in range(14):
        e(f"buffer_load_dwordx4 v[{XF+4*ks}:{XF+4*ks+3}], v4, s[72:75], 0 offen offset:{ks*64}")
    e("v_mov_b32 v6, 0")
    e(f"global_load_dwordx2 v[{T0}:{T1}], v6, s[28:29] offset:{WS_EPOCH} sc1")
    if qfirst: e("s_barrier")
    e("v_and_b32 v3, 15, v1")
    e("v_lshrrev_b32 v6, 2, v3")
    e("v_lshlrev_b32 v6, 6, v6")
    e("v_and_b32 v7, 3, v3")
    e("v_lshl_add_u32 v6, v7, 3, v6")
    e("v_lshl_add_u32 v6, v5, 9, v6")
    e("s_waitcnt vmcnt(0)")
    stamp(6)
    e(f"v_readfirstlane_b32 s30, v{T0}")
    e(f"v_readfirstlane_b32 s31, v{T1}")
    def trread(ks):
        for ct in range(2):
            r = BQ + (ks * 2 + ct) * 4
            e(f"ds_read_b64_tr_b16 v[{r}:{r+1}], v6 offset:{ks*2048 + ct*32}")
            e(f"ds_read_b64_tr_b16 v[{r+2}:{r+3}], v6 offset:{ks*2048 + ct*32 + 256}")
    def qmf(ks):
        for ct in range(2):
            r = BQ + (ks * 2 + ct) * 4
            d = 24 + 4 * ct
            c_ = "0" if ks == 0 else f"v[{d}:{d+3}]"
            e(f"v_mfma_f32_16x16x32_bf16 v[{d}:{d+3}], v[{XF+4*ks}:{XF+4*ks+3}], v[{r}:{r+3}], {c_}")
    for ks in range(3): trread(ks)
    e("s_add_u32 s30, s30, 1")
    e("s_addc_u32 s31, s31, 0")
    for ks in range(14):
        left = min(14, ks + 3) - (ks + 1)
        e(f"s_waitcnt lgkmcnt({4*left})")
        qmf(ks)
        if ks + 3 < 14: trread(ks + 3)
    e("v_lshlrev_b32 v6, 9, v5")
    e("v_lshl_add_u32 v6, v3, 2, v6")
    e(f"v_add_u32 v6, {LDS_QT}, v6")
    e("s_nop 7")
    e("s_mov_b32 exec_hi, 0")
    for ct in range(2):
        for r in range(4):
            e(f"ds_write_b32 v6, v{24+4*ct+r} offset:{r*128 + ct*64}")
    e("s_mov_b64 exec, -1")
    e("v_lshlrev_b32 v6, 4, v1")
    e(f"v_add_u32 v6, {LDS_QT}, v6")
    e("s_waitcnt lgkmcnt(0)")
    e("ds_read_b128 v[32:35], v6")
    e("v_lshrrev_b32 v6, 3, v1")
    e("v_lshlrev_b32 v6, 14, v6")
    e("v_and_b32 v7, 7, v1")
    e("v_lshl_add_u32 v6, v7, 4, v6")
    e("s_lshl_b32 s41, s80, 17")
    e("s_lshl_b32 s42, s81, 7")
    e("s_add_u32 s41, s41, s42")
    e(f"s_add_u32 s41, s41, {WS_QG}")
    e("s_add_u32 s82, s28, s41")
    e("s_addc_u32 s83, s29, 0")
    e("v_mov_b32 v38, s30")
    e("v_mov_b32 v39, s31")
    e("s_waitcnt lgkmcnt(0)")
    e("v_cvt_pk_bf16_f32 v36, v32, v33")
    e("v_cvt_pk_bf16_f32 v37, v34, v35")
    e("global_store_dwordx4 v6, v[36:39], s[82:83] sc1")
    stamp(7)
    e("s_cmp_lt_u32 s2, 64")
    e("s_cbranch_scc1 L_helper0")

    KV = 4
    VV = 12
    KA = 13
    vM, vL, vNMC, vTK, vONE, vTINC = 18, 19, 20, 21, 22, 17
    S0, PP, TT, ACC, VB = 24, 32, 36, 48, (112, 176)
    aK, aQ = 0, 64
    e.label("L_unit_setup")
    e("s_sub_u32 s40, s2, 64")
    e("s_cmp_lt_u32 s40, 64")
    e("s_cselect_b32 s52, 1, 0")
    e("s_cselect_b32 s32, s6, s16")
    e("s_cselect_b32 s33, s7, s17")
    e("s_cselect_b32 s36, s8, s18")
    e("s_cselect_b32 s37, s9, s19")
    e("s_cselect_b32 s41, 0, 64")
    e("s_sub_u32 s40, s40, s41")
    e("s_lshl_b32 s41, s40, 21")
    e("s_add_u32 s32, s32, s41")
    e("s_addc_u32 s33, s33, 0")
    e("s_add_u32 s36, s36, s41")
    e("s_addc_u32 s37, s37, 0")
    e("s_and_b32 s33, s33, 0xffff")
    e("s_and_b32 s37, s37, 0xffff")
    e("s_mov_b32 s34, 0x200000")
    e("s_mov_b32 s35, 0x20000")
    e("s_mov_b32 s38, 0x200000")
    e("s_mov_b32 s39, 0x20000")
    e("s_lshl_b32 s43, s3, 15")
    e("v_lshrrev_b32 v2, 5, v1")
    e("v_and_b32 v3, 31, v1")
    e("v_lshlrev_b32 v23, 2, v2")
    e("v_xor_b32 v3, v3, v23")
    e("v_lshlrev_b32 v3, 4, v3")
    e("v_lshl_add_u32 v3, v2, 9, v3")
    for n in range(8):
        cst = (8 * (n & 1) + ((n >> 1) & 3)) * 16
        e(f"v_xor_b32 v{KV+n}, {cst}, v3")
    e("v_lshrrev_b32 v2, 4, v1")
    e("v_and_b32 v3, 15, v1")
    e("v_lshlrev_b32 v23, 4, v3")
    e(f"v_lshl_add_u32 v{VV}, v2, 9, v23")

    def issueK(slot, soff):
        for n in range(16):
            if n % 4 == 0:
                e(f"s_add_u32 s42, {soff}, {(n//4)*4096}")
                e(f"s_add_u32 m0, s43, {slot*16384 + (n//4)*4096}")
                e("s_nop 0")
            e(f"buffer_load_dwordx4 v{KV + (n & 7)}, s[32:35], s42 offen offset:{(n%4)*1024} {kflags} lds")
    def issueV(slot, soff):
        for i in range(8):
            if i % 2 == 0:
                e(f"s_add_u32 s42, {soff}, {(i//2)*4096}")
            for j in range(2):
                r = VB[slot] + (i * 2 + j) * 4
                e(f"buffer_load_dwordx4 v[{r}:{r+3}], v{VV}, s[36:39], s42 offen offset:{(i%2)*2048 + j*256} {vflags}")
    def prefetch():
        e("s_lshl_b32 s40, s3, 14")
        e("s_add_u32 s47, s40, 0x10000")
        issueK(0, "s40")
        if pace: e("s_waitcnt vmcnt(8)")
        issueV(0, "s40")
        if pace: e("s_waitcnt vmcnt(8)")
        issueK(1, "s47")
        if pace: e("s_waitcnt vmcnt(8)")
        issueV(1, "s47")

    e("s_cmp_eq_u32 s3, 0")
    e("s_cbranch_scc1 L_u_rest")
    if qfirst: e("s_barrier")
    prefetch()
    stamp(1)
    e.label("L_u_rest")
    e("s_sub_u32 s40, s2, 64")
    e("s_cmp_lg_u32 s52, 0")
    e("s_cselect_b32 s41, 0, 64")
    e("s_sub_u32 s40, s40, s41")
    e("s_cmp_lg_u32 s52, 0")
    e("s_cselect_b32 s41, 3, 4")
    e("s_cselect_b32 s47, 7, 15")
    e("s_cselect_b32 s54, 11, 10")
    e("s_cselect_b32 s55, 0, 0x20000")
    e("s_cselect_b32 s68, 10, 9")
    e("s_cselect_b32 s69, 0, 0x10000")
    e("s_lshr_b32 s42, s40, s41")
    e("s_and_b32 s53, s40, s47")
    e("s_lshl_b32 s41, s53, s54")
    e("s_lshl_b32 s47, s42, 14")
    e("s_add_u32 s41, s41, s47")
    e("s_add_u32 s41, s41, s55")
    e(f"s_add_u32 s41, s41, {WS_QG}")
    e("s_add_u32 s48, s28, s41")
    e("s_addc_u32 s49, s29, 0")
    e("s_lshl_b32 s41, s53, s68")
    e("s_lshl_b32 s47, s42, 13")
    e("s_add_u32 s41, s41, s47")
    e("s_add_u32 s41, s41, s69")
    e(f"s_add_u32 s41, s41, {WS_O}")
    e("s_add_u32 s50, s28, s41")
    e("s_addc_u32 s51, s29, 0")
    e(f"s_mov_b32 s44, {SCALE}")
    e("s_mov_b32 s45, 0x05040100")
    e("s_mov_b32 s46, 0x07060302")
    e("v_and_b32 v23, 3, v3")
    e("v_lshlrev_b32 v23, 2, v23")
    e(f"v_lshrrev_b32 v{T2}, 2, v3")
    e(f"v_add_u32 v23, v23, v{T2}")
    e("v_lshlrev_b32 v23, 9, v23")
    e("v_add_u32 v23, s43, v23")
    for jj in range(4):
        e(f"v_add_u32 v{T2}, {4*jj}, v2")
        e(f"v_xor_b32 v{T2}, v{T2}, v3")
        e(f"v_lshl_add_u32 v{KA+jj}, v{T2}, 4, v23")
    e(f"v_mov_b32 v{vTK}, {LDS_TK}")
    e(f"v_mov_b32 v{vONE}, 1")
    e("v_cmp_eq_u32 vcc, 0, v1")
    e(f"v_mov_b32 v{vM}, 0xff800000")
    e(f"v_mov_b32 v{vL}, 0")
    e(f"v_cndmask_b32 v{vTINC}, 0, 1, vcc")
    e(f"v_mov_b32 v{vNMC}, 0")
    for i in range(64):
        e(f"v_mov_b32 v{ACC+i}, 0")
    e("s_cmp_lg_u32 s3, 0")
    e("s_cbranch_scc1 L_u_bar")
    e.c("---- wave 0: wait for this unit's q granules")
    e("v_lshlrev_b32 v2, 4, v1")
    e("s_cmp_lg_u32 s52, 0")
    e("s_cselect_b32 s41, 1024, 0")
    e("v_add_u32 v3, s41, v2")
    e(f"s_mov_b32 s56, {spin}")
    e.label("L_u_poll")
    e(f"global_load_dwordx4 v[24:27], v2, s[48:49] sc1")
    e(f"global_load_dwordx4 v[28:31], v3, s[48:49] sc1")
    e("s_waitcnt vmcnt(0)")
    e("v_cmp_eq_u32 vcc, s30, v26")
    e("v_cmp_eq_u32 s[54:55], s31, v27")
    e("v_cmp_eq_u32 s[68:69], s30, v30")
    e("v_cmp_eq_u32 s[70:71], s31, v31")
    e("s_nop 1")
    e("s_and_b64 s[54:55], s[54:55], vcc")
    e("s_and_b64 s[68:69], s[68:69], s[70:71]")
    e("s_and_b64 s[54:55], s[54:55], s[68:69]")
    e("s_cmp_eq_u64 s[54:55], -1")
    e("s_cbranch_scc1 L_u_qready")
    if sleep_q: e(f"s_sleep {sleep_q}")
    e("s_sub_u32 s56, s56, 1")
    e("s_cmp_lg_u32 s56, 0")
    e("s_cbranch_scc1 L_u_poll")
    e.label("L_u_qready")
    e("v_lshlrev_b32 v2, 3, v1")
    e(f"v_add_u32 v2, {LDS_Q}, v2")
    e("ds_write_b64 v2, v[24:25]")
    e("ds_write_b64 v2, v[28:29] offset:512")
    e("v_mov_b32 v2, 8")
    e("v_mov_b32 v3, s30")
    e(f"ds_write_b64 v{vTK}, v[2:3]")
    if win:
        e(f"v_mov_b32 v2, {8 + win + 4}")
        e(f"ds_write_b32 v{vTK}, v2 offset:8")
    stamp(8)
    if prio: e("s_setprio 0")
    e("s_waitcnt lgkmcnt(0)")
    e("s_barrier")
    prefetch()
    stamp(1)
    e("s_branch L_u_go")
    e.label("L_u_bar")
    e("s_barrier")
    e.label("L_u_go")
    stamp(2)
    e("v_and_b32 v2, 1, v1")
    e("v_lshlrev_b32 v2, 9, v2")
    e("v_lshrrev_b32 v3, 4, v1")
    e("v_lshl_add_u32 v2, v3, 4, v2")
    e(f"v_add_u32 v2, {LDS_Q}, v2")
    for j in range(8):
        e(f"ds_read_b128 a[{aQ+4*j}:{aQ+4*j+3}], v2 offset:{j*64}")
    if win:
        e(f"ds_read_b32 v{vPV}, v{vTK} offset:4")
        e("s_sub_u32 s41, s2, 64")
        e("s_lshr_b32 s47, s41, 3")
        e("s_lshl_b32 s47, s47, 7")
        e(f"s_add_u32 s47, s47, {WS_PROG}")
        e("s_add_u32 s92, s28, s47")
        e("s_addc_u32 s93, s29, 0")
        e("s_and_b32 s94, s2, 7")
        e("s_lshl_b32 s94, s94, 2")
        e(f"v_and_b32 v{vPA}, 7, v1")
        e(f"v_lshlrev_b32 v{vPA}, 2, v{vPA}")
        e("s_waitcnt lgkmcnt(0)")
        e(f"v_readfirstlane_b32 s95, v{vPV}")
        e("s_nop 3")
        e("s_lshl_b32 s95, s95, 8")

    def prog_min():
        e(f"v_xor_b32 v{vPV}, s95, v{vPV}")
        e(f"v_cmp_gt_u32 vcc, 256, v{vPV}")
        e("s_nop 1")
        e(f"v_cndmask_b32 v{vPV}, 8, v{vPV}, vcc")
        e("s_nop 1")
        e(f"v_min_u32_dpp v{vPV}, v{vPV}, v{vPV} quad_perm:[1,0,3,2] row_mask:0xf bank_mask:0xf")
        e("s_nop 1")
        e(f"v_min_u32_dpp v{vPV}, v{vPV}, v{vPV} quad_perm:[2,3,0,1] row_mask:0xf bank_mask:0xf")
        e("s_nop 1")
        e(f"v_min_u32_dpp v{vPV}, v{vPV}, v{vPV} row_half_mirror row_mask:0xf bank_mask:0xf")
        e(f"v_add_u32 v{vPV}, {win}, v{vPV}")
        e(f"ds_write_b32 v{vTK}, v{vPV} offset:8")
        e(f"v_readfirstlane_b32 s68, v{vPV}")
    def prog_mid(u):
        e("s_cmp_lg_u32 s3, 0")
        e(f"s_cbranch_scc1 L_nofold_{u}")
        prog_min()
        e("s_nop 2")
        e("s_max_u32 s69, s69, s68")
        e.label(f"L_nofold_{u}")
    def prog_gate(u):
        e("s_cmp_le_u32 s41, s69")
        e(f"s_cbranch_scc1 L_go_{u}")
        e(f"s_mov_b32 s56, {spin}")
        e.label(f"L_gate_{u}")
        e(f"global_load_dword v{vPV}, v{vPA}, s[92:93] sc1")
        e("s_waitcnt vmcnt(0)")
        prog_min()
        e("s_nop 2")
        e("s_cmp_le_u32 s41, s68")
        e(f"s_cbranch_scc1 L_go_{u}")
        e("s_sleep 2")
        e("s_sub_u32 s56, s56, 1")
        e("s_cmp_lg_u32 s56, 0")
        e(f"s_cbranch_scc1 L_gate_{u}")
        e.label(f"L_go_{u}")
    def prog_post(u):
        e("s_cmp_lg_u32 s3, 0")
        e(f"s_cbranch_scc1 L_nopost_{u}")
        e("s_min_u32 s68, s41, 255")
        e("s_or_b32 s68, s68, s95")
        e(f"v_mov_b32 v{T2}, s94")
        e(f"v_mov_b32 v{T3}, s68")
        e("s_mov_b64 exec, 1")
        e(f"global_store_dword v{T2}, v{T3}, s[92:93] sc1")
        e("s_mov_b64 exec, -1")
        e(f"global_load_dword v{vPV}, v{vPA}, s[92:93] sc1")
        e.label(f"L_nopost_{u}")

    uid = [0]
    def step(slot, kind):
        uid[0] += 1
        u = uid[0]
        steady = kind == "steady"
        if steady and steptime:
            e("s_memrealtime s[62:63]")
            e(f"s_lshr_b32 s68, s57, {1 if nact <= 2 else 0}")
            e("s_min_u32 s68, s68, 39")
            e("s_add_u32 s68, s68, 24")
            e("s_mov_b32 m0, s68")
            e("s_waitcnt lgkmcnt(0)")
            e("v_writelane_b32 v254, s62, m0")
            e("s_add_u32 s57, s57, 1")
        if steady: pf(6)
        if mode == "alt":
            wk = {'first0':48, 'first1':16, 'steady':0}[kind]
            wv = {'first0':32, 'first1':0, 'steady':0}[kind]
        else:
            wk = {'first0':48, 'first1':16, 'steady':16}[kind]
            wv = {'first0':32, 'first1':16, 'steady':16}[kind]
        tick = kind != "first0"
        if tick:
            if nact < 4 and kind == "first1":
                e(f"s_cmp_ge_u32 s3, {nact}")
                e(f"s_cbranch_scc1 L_notick_{u}")
            e(f"ds_add_rtn_u32 v{T3}, v{vTK}, v{vTINC}")
            if win: e(f"ds_read_b32 v{T2}, v{vTK} offset:8")
            if nact < 4 and kind == "first1":
                e.label(f"L_notick_{u}")
        if win and steady:
            assert mode == "alt" and nact == 4
            e("s_cmp_lg_u32 s3, 0")
            e(f"s_cbranch_scc1 L_wk_{u}")
            e("s_waitcnt vmcnt(2)")
            e(f"s_branch L_wk2_{u}")
            e.label(f"L_wk_{u}")
            e("s_waitcnt vmcnt(0)")
            e.label(f"L_wk2_{u}")
        else:
            e(f"s_waitcnt vmcnt({wk})")
        if steady: pf(0)
        if mode == "alt" and steady:
            issueV(slot, "s40")
        if steady: pf(1)
        so = slot * 16384
        def rd(j):
            for t in range(2):
                r = aK + (j * 2 + t) * 4
                e(f"ds_read_b128 a[{r}:{r+3}], v{KA + (j & 3)} offset:{so + t*8192 + (j>>2)*256}")
        def mf(j):
            for t in range(2):
                r = aK + (j * 2 + t) * 4
                c_ = "0" if j == 0 else f"v[{S0+4*t}:{S0+4*t+3}]"
                e(f"v_mfma_f32_16x16x32_bf16 v[{S0+4*t}:{S0+4*t+3}], a[{r}:{r+3}], a[{aQ+4*j}:{aQ+4*j+3}], {c_}")
        for j in range(6): rd(j)
        e("s_waitcnt lgkmcnt(8)")
        mf(0); mf(1)
        rd(6); rd(7)
        e("s_waitcnt lgkmcnt(8)")
        mf(2); mf(3)
        e("s_waitcnt lgkmcnt(4)")
        mf(4); mf(5)
        e("s_waitcnt lgkmcnt(0)")
        mf(6); mf(7)
        if tick:
            e(f"v_readfirstlane_b32 s41, v{T3}")
            if nact < 4 and kind == "first1":
                e(f"s_cmp_ge_u32 s3, {nact}")
                e(f"s_cselect_b32 s41, {NT}, s41")
            if win:
                e(f"v_readfirstlane_b32 s69, v{T2}")
        if mode == "mid" and tick:
            e(f"s_cmp_ge_u32 s41, {NT}")
            e(f"s_cbranch_scc1 L_last_{u}")
            e("s_lshl_b32 s40, s41, 14")
            issueK(slot ^ 1, "s40")
        def softmax_pv(tag, wv_, after_v, after_pv):
            e("s_nop 7")
            e(f"v_max3_f32 v{T0}, v{S0}, v{S0+1}, v{S0+2}")
            e(f"v_max3_f32 v{T1}, v{S0+3}, v{S0+4}, v{S0+5}")
            e(f"v_max3_f32 v{T0}, v{S0+6}, v{S0+7}, v{T0}")
            e(f"v_max_f32 v{T0}, v{T0}, v{T1}")
            e(f"v_mov_b32 v{T1}, v{T0}")
            e("s_nop 1")
            e(f"v_permlane16_swap_b32 v{T1}, v{T0}")
            e(f"v_max_f32 v{T0}, v{T0}, v{T1}")
            e(f"v_mov_b32 v{T1}, v{T0}")
            e("s_nop 1")
            e(f"v_permlane32_swap_b32 v{T1}, v{T0}")
            e(f"v_max3_f32 v{T0}, v{T0}, v{T1}, v{vM}")
            e(f"v_cmp_gt_f32 vcc, v{T0}, v{vM}")
            e(f"s_cbranch_vccz L_norescale_{tag}")
            e(f"v_sub_f32 v{T1}, v{vM}, v{T0}")
            e(f"v_mul_f32 v{T1}, s44, v{T1}")
            e(f"v_exp_f32 v{T1}, v{T1}")
            e(f"v_mov_b32 v{vM}, v{T0}")
            e(f"v_mul_f32 v{vNMC}, s44, v{T0}")
            e(f"v_mul_f32 v{vL}, v{vL}, v{T1}")
            e(f"v_sub_f32 v{vNMC}, 0, v{vNMC}")
            for i in range(64):
                e(f"v_mul_f32 v{ACC+i}, v{ACC+i}, v{T1}")
            e.label(f"L_norescale_{tag}")
            for i in range(8):
                e(f"v_fma_f32 v{S0+i}, v{S0+i}, s44, v{vNMC}")
            for i in range(8):
                e(f"v_exp_f32 v{S0+i}, v{S0+i}")
            e("s_nop 0")
            e(f"v_add_f32 v{T0}, v{S0}, v{S0+1}")
            e(f"v_add_f32 v{T1}, v{S0+2}, v{S0+3}")
            e(f"v_add_f32 v{T2}, v{S0+4}, v{S0+5}")
            e(f"v_cvt_pk_bf16_f32 v{PP}, v{S0}, v{S0+1}")
            e(f"v_add_f32 v{T0}, v{T0}, v{T1}")
            e(f"v_add_f32 v{T1}, v{S0+6}, v{S0+7}")
            e(f"v_cvt_pk_bf16_f32 v{PP+1}, v{S0+2}, v{S0+3}")
            e(f"v_add_f32 v{T2}, v{T2}, v{T1}")
            e(f"v_cvt_pk_bf16_f32 v{PP+2}, v{S0+4}, v{S0+5}")
            e(f"v_add_f32 v{T0}, v{T0}, v{T2}")
            e(f"v_cvt_pk_bf16_f32 v{PP+3}, v{S0+6}, v{S0+7}")
            e(f"v_add_f32 v{vL}, v{vL}, v{T0}")
            if steady: pf(2)
            e(f"s_waitcnt vmcnt({wv_})")
            if steady: pf(3)
            after_v()
            if steady: pf(4)
            vb = VB[slot]
            def perms(j, ee, tb):
                sel = "s45" if (ee & 1) == 0 else "s46"
                for ip in range(4):
                    lo = vb + ((2 * ip) * 2 + j) * 4 + (ee >> 1)
                    hi = vb + ((2 * ip + 1) * 2 + j) * 4 + (ee >> 1)
                    e(f"v_perm_b32 v{tb+ip}, v{hi}, v{lo}, {sel}")
            seq = [(j, ee) for j in range(2) for ee in range(8)]
            perms(*seq[0], TT)
            for idx, (j, ee) in enumerate(seq):
                tb = TT + 4 * (idx % 3)
                if idx + 1 < len(seq):
                    perms(*seq[idx + 1], TT + 4 * ((idx + 1) % 3))
                else:
                    e("s_nop 1")
                a = ACC + (j * 8 + ee) * 4
                e(f"v_mfma_f32_16x16x32_bf16 v[{a}:{a+3}], v[{tb}:{tb+3}], v[{PP}:{PP+3}], v[{a}:{a+3}]")
            after_pv()
            if steady: pf(5)
        if mode == "alt":
            def av():
                if kind != "first0":
                    if win and steady: prog_mid(u)
                    e(f"s_cmp_ge_u32 s41, {NT}")
                    e(f"s_cbranch_scc1 L_nok_{u}")
                    if win: prog_gate(u)
                    e("s_lshl_b32 s40, s41, 14")
                    issueK(slot ^ 1, "s40")
                    e.label(f"L_nok_{u}")
                    if win: prog_post(u)
            softmax_pv(u, wv, av, lambda: None)
            if kind != "first0":
                e(f"s_cmp_ge_u32 s41, {NT}")
                e("s_cbranch_scc1 L_u_done")
        else:
            if kind == "first0":
                softmax_pv(u, wv, lambda: None, lambda: None)
            else:
                softmax_pv(u, wv, lambda: None, lambda: issueV(slot ^ 1, "s40"))
                e(f"s_branch L_next_{u}")
                e.label(f"L_last_{u}")
                softmax_pv(f"{u}b", 0, lambda: None, lambda: None)
                e("s_branch L_u_done")
                e.label(f"L_next_{u}")

    e("s_waitcnt lgkmcnt(0)")
    step(0, "first0")
    step(1, "first1")
    if prof:
        for k in range(8): e(f"s_mov_b32 s{84+k}, 0")
        e("s_memtime s[64:65]")
        e("s_waitcnt lgkmcnt(0)")
        e("s_mov_b32 s67, s64")
    if steptime: e("s_mov_b32 s57, 0")
    e.label("L_u_loop")
    step(0, "steady")
    step(1, "steady")
    e("s_branch L_u_loop")
    e.label("L_u_done")
    stamp(3)
    if prof:
        for k in range(7): e(f"v_writelane_b32 v254, s{84+k}, {16+k}")
    if steptime:
        e("v_writelane_b32 v254, s57, 23")
        e(f"s_mov_b32 s68, {1 if nact <= 2 else 0}")
        e("v_writelane_b32 v254, s68, 15")
    e.c("---- every wave leaves (m, l) and its unscaled accumulators in LDS")
    e("s_cmp_lg_u32 s3, 0")
    e("s_cbranch_scc1 L_u_noh")
    e(f"v_lshlrev_b32 v{vTINC}, 3, v1")
    e(f"s_add_u32 s58, s28, {WS_H}")
    e("s_addc_u32 s59, s29, 0")
    e(f"global_load_dwordx2 v[{T2}:{T3}], v{vTINC}, s[58:59] sc1")
    e.label("L_u_noh")
    e(f"v_mov_b32 v{T1}, v{vL}")
    e("s_nop 1")
    e(f"v_permlane16_swap_b32 v{T1}, v{vL}")
    e(f"v_add_f32 v{vL}, v{vL}, v{T1}")
    e(f"v_mov_b32 v{T1}, v{vL}")
    e("s_nop 1")
    e(f"v_permlane32_swap_b32 v{T1}, v{vL}")
    e(f"v_add_f32 v{vL}, v{vL}, v{T1}")
    e("v_and_b32 v2, 1, v1")
    e("v_lshlrev_b32 v3, 3, v2")
    e(f"v_add_u32 v3, {LDS_ST}, v3")
    e("s_lshl_b32 s41, s3, 4")
    e("v_add_u32 v3, s41, v3")
    e("v_lshlrev_b32 v2, 10, v2")
    e("v_lshrrev_b32 v23, 4, v1")
    e("v_lshl_add_u32 v2, v23, 7, v2")
    e("v_add_u32 v2, s43, v2")
    e("s_mov_b32 exec_lo, 0x00030003")
    e("s_mov_b32 exec_hi, 0x00030003")
    for j in range(2):
        for r in range(4):
            for ee in range(0, 8, 2):
                o0 = j * 128 + r * 8 + ee
                e(f"ds_write2_b32 v2, v{ACC + (j*8+ee)*4 + r}, v{ACC + (j*8+ee+1)*4 + r} offset0:{o0} offset1:{o0+1}")
    e("s_mov_b64 exec, 3")
    e(f"ds_write_b64 v3, v[{vM}:{vL}]")
    e("s_mov_b64 exec, -1")
    e("s_waitcnt lgkmcnt(0)")
    e("s_barrier")
    stamp(9)
    e("s_cmp_lg_u32 s3, 0")
    e("s_cbranch_scc1 L_u_exit")
    e("v_lshrrev_b32 v2, 5, v1")
    e("v_lshlrev_b32 v2, 3, v2")
    e(f"v_add_u32 v2, {LDS_ST}, v2")
    for w in range(4):
        e(f"ds_read_b64 v[{S0+2*w}:{S0+2*w+1}], v2 offset:{w*16}")
    e("v_lshlrev_b32 v2, 5, v1")
    e("v_add_u32 v3, 0x10000, v2")
    for w in range(4):
        vr = "v2" if w < 2 else "v3"
        e(f"ds_read_b128 v[{ACC+8*w}:{ACC+8*w+3}], {vr} offset:{(w&1)*32768}")
        e(f"ds_read_b128 v[{ACC+8*w+4}:{ACC+8*w+7}], {vr} offset:{(w&1)*32768+16}")
    e("s_waitcnt lgkmcnt(8)")
    e(f"v_max3_f32 v{T0}, v{S0}, v{S0+2}, v{S0+4}")
    e(f"v_max_f32 v{T0}, v{T0}, v{S0+6}")
    for w in range(4):
        e(f"v_sub_f32 v{S0+2*w}, v{S0+2*w}, v{T0}")
    for w in range(4):
        e(f"v_mul_f32 v{S0+2*w}, s44, v{S0+2*w}")
    for w in range(4):
        e(f"v_exp_f32 v{S0+2*w}, v{S0+2*w}")
    e("s_nop 0")
    e(f"v_mul_f32 v{T1}, v{S0}, v{S0+1}")
    e(f"v_fma_f32 v{T1}, v{S0+2}, v{S0+3}, v{T1}")
    e(f"v_fma_f32 v{T1}, v{S0+4}, v{S0+5}, v{T1}")
    e(f"v_fma_f32 v{T1}, v{S0+6}, v{S0+7}, v{T1}")
    e(f"v_rcp_f32 v{T1}, v{T1}")
    e("s_nop 0")
    for w in range(4):
        e(f"v_mul_f32 v{S0+2*w}, v{S0+2*w}, v{T1}")
    e("s_waitcnt lgkmcnt(0)")
    for i in range(8):
        e(f"v_mul_f32 v{ACC+i}, v{ACC+i}, v{S0}")
    for w in range(1, 4):
        for i in range(8):
            e(f"v_fma_f32 v{ACC+i}, v{ACC+8*w+i}, v{S0+2*w}, v{ACC+i}")
    for i in range(4):
        e(f"v_cvt_pk_bf16_f32 v{PP+i}, v{ACC+2*i}, v{ACC+2*i+1}")
    e("v_lshlrev_b32 v2, 4, v1")
    e("s_cmp_lg_u32 s52, 0")
    e("s_cbranch_scc1 L_u_storeA")
    e("s_mov_b32 exec_hi, 0")
    e.label("L_u_storeA")
    e(f"global_store_dwordx4 v2, v[{PP}:{PP+3}], s[50:51] sc1")
    e("s_mov_b64 exec, -1")
    e("s_cmp_lg_u32 s52, 0")
    e("s_cselect_b32 s41, 0, 28")
    e("v_add_u32 v2, s41, v1")
    e("v_lshlrev_b32 v2, 7, v2")
    e("s_lshl_b32 s41, s53, 2")
    e("v_add_u32 v2, s41, v2")
    e(f"s_mov_b32 s56, {spin}")
    e.label("L_u_hchk")
    e("s_waitcnt vmcnt(0)")
    e(f"v_cmp_eq_u32 vcc, s30, v{T2}")
    e(f"v_cmp_eq_u32 s[54:55], s31, v{T3}")
    e("s_nop 1")
    e("s_and_b64 s[54:55], s[54:55], vcc")
    e("s_cmp_eq_u64 s[54:55], -1")
    e("s_cbranch_scc1 L_u_sig")
    e(f"global_load_dwordx2 v[{T2}:{T3}], v{vTINC}, s[58:59] sc1")
    e("s_sub_u32 s56, s56, 1")
    e("s_cmp_lg_u32 s56, 0")
    e("s_cbranch_scc1 L_u_hchk")
    e.label("L_u_sig")
    stamp(10)
    e(f"s_add_u32 s58, s28, {WS_REP}")
    e("s_addc_u32 s59, s29, 0")
    e("s_mov_b32 exec_lo, 0x0fffffff")
    e("s_mov_b32 exec_hi, 0")
    e(f"global_atomic_add v2, v{vONE}, s[58:59] sc1")
    e("s_mov_b64 exec, -1")
    e.label("L_u_exit")
    stamp(4)
    stamp_flush()
    e("s_endpgm")

    WB, QA = 112, 48
    e.label("L_helper0")
    e.c("---- wave 0 of a helper: clear the replica line, then say so")
    e("s_lshr_b32 s53, s2, 3")
    e("s_and_b32 s52, s2, 7")
    e("s_mul_i32 s52, s52, 7")
    e("s_add_u32 s52, s52, s53")
    e("s_lshl_b32 s47, s52, 7")
    e(f"s_add_u32 s47, s47, {WS_REP}")
    e("s_add_u32 s58, s28, s47")
    e("s_addc_u32 s59, s29, 0")
    e("s_cmp_eq_u32 s53, 7")
    e("s_cbranch_scc1 L_h_nozero")
    e("v_and_b32 v6, 31, v1")
    e("v_lshlrev_b32 v6, 2, v6")
    e("v_mov_b32 v7, 0")
    e("global_store_dword v6, v7, s[58:59] sc1")
    e.label("L_h_nozero")
    e("s_waitcnt vmcnt(0)")
    e("s_lshl_b32 s47, s2, 3")
    e(f"s_add_u32 s47, s47, {WS_H}")
    e("v_mov_b32 v6, s47")
    e("s_mov_b64 exec, 1")
    e("global_store_dwordx2 v6, v[38:39], s[28:29] sc1")
    e("s_mov_b64 exec, -1")
    if prio: e("s_setprio 0")
    stamp(2)
    e("s_branch L_h_join")
    e.label("L_h_join0")
    if qfirst: e("s_barrier")
    e.label("L_h_join")
    e("s_barrier")
    e("s_lshr_b32 s53, s2, 3")
    e("s_and_b32 s52, s2, 7")
    e("s_mul_i32 s52, s52, 7")
    e("s_add_u32 s52, s52, s53")
    e("s_cmp_eq_u32 s53, 7")
    e("s_cbranch_scc1 L_h_keeper")
    e("s_lshl_b32 s47, s52, 7")
    e(f"s_add_u32 s47, s47, {WS_REP}")
    e("s_add_u32 s58, s28, s47")
    e("s_addc_u32 s59, s29, 0")
    e("s_cmp_ge_u32 s52, 28")
    e("s_cselect_b32 s40, 1, 0")
    e("s_cselect_b32 s47, 28, 0")
    e("s_sub_u32 s41, s52, s47")
    e("s_cmp_eq_u32 s40, 0")
    e("s_cselect_b32 s36, s12, s22")
    e("s_cselect_b32 s37, s13, s23")
    e("s_and_b32 s37, s37, 0xffff")
    e("s_mov_b32 s38, 3670016")
    e("s_mov_b32 s39, 0x20000")
    e("v_lshrrev_b32 v2, 4, v1")
    e("v_and_b32 v3, 15, v1")
    e("v_lshrrev_b32 v6, 1, v1")
    e("v_mul_u32_u24 v6, 896, v6")
    e("v_and_b32 v7, 1, v1")
    e("v_lshl_add_u32 v6, v7, 4, v6")
    e("s_mul_i32 s42, s3, 917504")
    e("s_lshl_b32 s47, s41, 5")
    e("s_add_u32 s42, s42, s47")
    e("s_lshl_b32 s43, s3, 15")
    for n in range(32):
        e(f"s_add_u32 s47, s42, {n*32*896}")
        e(f"s_add_u32 m0, s43, {n*1024}")
        e("s_nop 0")
        e(f"buffer_load_dwordx4 v6, s[36:39], s47 offen {woflags} lds")
    e("v_lshrrev_b32 v7, 2, v3")
    e("v_lshlrev_b32 v7, 5, v7")
    e("v_and_b32 v8, 3, v3")
    e("v_lshl_add_u32 v7, v8, 3, v7")
    e("v_lshl_add_u32 v7, v2, 8, v7")
    e("v_add_u32 v7, s43, v7")
    e("s_waitcnt vmcnt(0)")
    stamp(3)
    for ks in range(32):
        e(f"ds_read_b64_tr_b16 a[{4*ks}:{4*ks+1}], v7 offset:{ks*1024}")
        e(f"ds_read_b64_tr_b16 a[{4*ks+2}:{4*ks+3}], v7 offset:{ks*1024+128}")
        if ks % 4 == 3:
            e("s_waitcnt lgkmcnt(0)")
    e("v_lshlrev_b32 v9, 2, v3")
    e("s_lshl_b32 s47, s40, 16")
    e(f"s_add_u32 s47, s47, {WS_O}")
    e("s_add_u32 s48, s28, s47")
    e("s_addc_u32 s49, s29, 0")
    e("v_and_b32 v10, 7, v1")
    e("v_lshlrev_b32 v10, 13, v10")
    e("v_lshl_add_u32 v10, v2, 4, v10")
    e("s_lshl_b32 s47, s3, 11")
    e("v_add_u32 v10, s47, v10")
    for hh in range(4):
        e(f"s_lshl_b32 s68, s3, 1")
        e(f"s_add_u32 s68, s68, {hh >> 1}")
        e(f"s_lshl_b32 s69, s3, 2")
        e(f"s_add_u32 s69, s69, {hh}")
        e("s_cmp_eq_u32 s40, 0")
        e(f"s_cselect_b32 s{72+hh}, s68, s69")
    e("s_mov_b32 s57, 15")
    e(f"s_mov_b32 s56, {spin}")
    e.label("L_h_poll")
    e("global_load_dword v11, v9, s[58:59] sc1")
    e("s_waitcnt vmcnt(0)")
    for hh in range(4):
        e(f"s_bitcmp1_b32 s57, {hh}")
        e(f"s_cbranch_scc0 L_h_skip{hh}")
        e(f"v_readlane_b32 s68, v11, s{72+hh}")
        e("s_nop 3")
        e("s_cmp_lt_u32 s68, 8")
        e(f"s_cbranch_scc1 L_h_skip{hh}")
        e(f"s_bitset0_b32 s57, {hh}")
        e("s_mov_b32 exec_lo, 0x00ff00ff")
        e("s_mov_b32 exec_hi, 0x00ff00ff")
        for ks in range(8 * hh, 8 * hh + 8):
            r = WB + 4 * ks
            e(f"global_load_dwordx4 v[{r}:{r+3}], v10, s[48:49] offset:{ks*64} sc1")
        e("s_mov_b64 exec, -1")
        e.label(f"L_h_skip{hh}")
    e("s_cmp_eq_u32 s57, 0")
    e("s_cbranch_scc1 L_h_ready")
    if sleep_o: e(f"s_sleep {sleep_o}")
    e("s_sub_u32 s56, s56, 1")
    e("s_cmp_lg_u32 s56, 0")
    e("s_cbranch_scc1 L_h_poll")
    e.label("L_h_ready")
    stamp(4)
    e("s_waitcnt vmcnt(0)")
    stamp(11)
    for ks in range(32):
        r = WB + 4 * ks
        a = QA + 4 * (ks % 4)
        c_ = "0" if ks < 4 else f"v[{a}:{a+3}]"
        e(f"v_mfma_f32_16x16x32_bf16 v[{a}:{a+3}], v[{r}:{r+3}], a[{4*ks}:{4*ks+3}], {c_}")
    e("v_lshlrev_b32 v6, 8, v2")
    e("v_lshl_add_u32 v6, v3, 2, v6")
    e("s_lshl_b32 s47, s3, 9")
    e(f"s_add_u32 s47, s47, {LDS_RED}")
    e("v_add_u32 v6, s47, v6")
    e("s_nop 7")
    for i in range(4):
        e(f"v_add_f32 v{QA+i}, v{QA+i}, v{QA+4+i}")
        e(f"v_add_f32 v{QA+8+i}, v{QA+8+i}, v{QA+12+i}")
    for i in range(4):
        e(f"v_add_f32 v{QA+i}, v{QA+i}, v{QA+8+i}")
    e("s_mov_b32 exec_hi, 0")
    for r in range(4):
        e(f"ds_write_b32 v6, v{QA+r} offset:{r*64}")
    e("s_mov_b64 exec, -1")
    e("s_waitcnt lgkmcnt(0)")
    e("s_barrier")
    e("s_cmp_lg_u32 s3, 0")
    e("s_cbranch_scc1 L_h_exit")
    e("v_lshlrev_b32 v6, 3, v1")
    e(f"v_add_u32 v6, {LDS_RED}, v6")
    for w in range(4):
        e(f"ds_read_b64 v[{QA+2*w}:{QA+2*w+1}], v6 offset:{w*512}")
    e("v_lshrrev_b32 v6, 3, v1")
    e("v_mul_u32_u24 v6, 1792, v6")
    e("v_and_b32 v7, 7, v1")
    e("v_lshl_add_u32 v6, v7, 2, v6")
    e("s_mul_i32 s47, s40, 896")
    e("s_lshl_b32 s48, s41, 5")
    e("s_add_u32 s47, s47, s48")
    e("v_add_u32 v6, s47, v6")
    e("s_waitcnt lgkmcnt(0)")
    e(f"v_add_f32 v{QA}, v{QA}, v{QA+2}")
    e(f"v_add_f32 v{QA+1}, v{QA+1}, v{QA+3}")
    e(f"v_add_f32 v{QA+4}, v{QA+4}, v{QA+6}")
    e(f"v_add_f32 v{QA+5}, v{QA+5}, v{QA+7}")
    e(f"v_add_f32 v{QA}, v{QA}, v{QA+4}")
    e(f"v_add_f32 v{QA+1}, v{QA+1}, v{QA+5}")
    e(f"v_cvt_pk_bf16_f32 v{QA}, v{QA}, v{QA+1}")
    e(f"global_store_dword v6, v{QA}, s[24:25]")
    e("s_branch L_h_exit")

    e.label("L_h_keeper")
    e.c("---- wg 56, wave 0: once every unit and helper is past its use of the epoch word, advance it")
    e("s_cmp_lg_u32 s2, 56")
    e("s_cbranch_scc1 L_h_exit")
    e("s_cmp_lg_u32 s3, 0")
    e("s_cbranch_scc1 L_h_exit")
    e("v_min_u32 v2, 23, v1")
    e("v_cmp_gt_u32 vcc, 8, v2")
    e("v_lshlrev_b32 v3, 2, v2")
    e(f"v_add_u32 v4, {28*128 - 32}, v3")
    e("v_cndmask_b32 v3, v4, v3, vcc")
    e(f"v_add_u32 v3, {WS_REP}, v3")
    e("v_lshlrev_b32 v4, 3, v1")
    e(f"v_add_u32 v4, {WS_H}, v4")
    e(f"s_mov_b32 s56, {spin}")
    e.label("L_k_poll")
    e("global_load_dword v5, v3, s[28:29] sc1")
    e("global_load_dwordx2 v[6:7], v4, s[28:29] sc1")
    e("s_waitcnt vmcnt(0)")
    e("v_cmp_le_u32 vcc, 8, v5")
    e("v_cmp_eq_u32 s[54:55], s30, v6")
    e("v_cmp_eq_u32 s[68:69], s31, v7")
    e("s_nop 1")
    e("s_and_b64 s[54:55], s[54:55], vcc")
    e("s_and_b64 s[54:55], s[54:55], s[68:69]")
    e("s_cmp_eq_u64 s[54:55], -1")
    e("s_cbranch_scc1 L_k_done")
    e("s_sleep 8")
    e("s_sub_u32 s56, s56, 1")
    e("s_cmp_lg_u32 s56, 0")
    e("s_cbranch_scc1 L_k_poll")
    e.label("L_k_done")
    e("v_mov_b32 v2, 0")
    e("v_mov_b32 v6, s30")
    e("v_mov_b32 v7, s31")
    e("s_mov_b64 exec, 1")
    e(f"global_store_dwordx2 v2, v[6:7], s[28:29] offset:{WS_EPOCH} sc1")
    e("s_mov_b64 exec, -1")
    e.label("L_h_exit")
    stamp(5)
    stamp_flush()
    e.label("L_end")
    e("s_endpgm")
    e.l.append('.section .rodata,"a"')
    e.l.append(".p2align 6")
    e.l.append(f".amdhsa_kernel {KN}")
    e.l.append("  .amdhsa_next_free_vgpr 384")
    e.l.append("  .amdhsa_next_free_sgpr 96")
    e.l.append("  .amdhsa_accum_offset 256")
    e.l.append("  .amdhsa_group_segment_fixed_size 0")
    e.l.append("  .amdhsa_kernarg_size 104")
    e.l.append("  .amdhsa_user_sgpr_count 2")
    e.l.append("  .amdhsa_user_sgpr_kernarg_segment_ptr 1")
    e.l.append("  .amdhsa_system_sgpr_workgroup_id_x 1")
    e.l.append(".end_amdhsa_kernel")
    return "\n".join(e.l) + "\n"

if __name__ == "__main__":
    kw = dict(a.split("=") for a in sys.argv[2:])
    for k in kw:
        try: kw[k] = int(kw[k])
        except: kw[k] = kw[k].replace("+", " ")
    for k in list(kw):
        if kw[k] == "none": kw[k] = ""
    open(sys.argv[1], "w").write(gen(**kw))
```

```python
import sys
KN = "concat_heads__gqa_block_cached__mha_block_cached__decode_kernel"

HEADER = """; Fused decode attention (two problems: GQA 'A' and MHA 'B') for gfx950, one launch.
;   every wg, wave 0 : 32 columns of q = x @ wq for all 8 batches, published as 16-byte {4 x bf16, 64-bit epoch} granules
"""

class G:
    def __init__(self):
        self.l = []
    def __call__(self, s):
        self.l.append("  " + s)
    def label(self, s):
        self.l.append(s + ":")
    def c(self, s):
        self.l.append("  ; " + s)

def gen(stamps=0, spin=1 << 18, kflags="nt", vflags="nt", wqflags="nt", woflags="nt", sleep_q=1, sleep_o=4, mode="alt",
        prof=0, steptime=0, nact=4, prio=1, pace=0, qfirst=1, win=0, dbg=0, outflags="", split=0, nrep=1, qloop=1, earlyv=124, puball=0, womap=1):
    e = G()
    LDS_Q, LDS_TK, LDS_ST, LDS_QT, LDS_RED = 131072, 132096, 132128, 133120, 135168
    LDS_BYTES = 139264
    WS_EPOCH, WS_H, WS_REP, WS_QG, WS_O, WS_STAMP = 0, 0x1000, 0x2000, 0x10000, 0x60000, 0x20000000
    WS_PROG = 0x4000
    vPA, vPV = 244, 245
    NT = 128
    SCALE = 0x3DB8AA3B

    def stamp(idx):
        if not stamps: return
        e("s_memrealtime s[62:63]")
        e("s_waitcnt lgkmcnt(0)")
        e(f"v_writelane_b32 v254, s62, {idx}")
    def stamp_flush():
        if not stamps: return
        e("s_lshl_b32 s60, s2, 10")
        e("s_lshl_b32 s61, s3, 8")
        e("s_add_u32 s60, s60, s61")
        e(f"s_add_u32 s62, s28, {WS_STAMP}")
        e("s_addc_u32 s63, s29, 0")
        e("s_add_u32 s62, s62, s60")
        e("s_addc_u32 s63, s63, 0")
        e("v_mbcnt_lo_u32_b32 v253, -1, 0")
        e("v_mbcnt_hi_u32_b32 v253, -1, v253")
        e("v_lshlrev_b32 v253, 2, v253")
        e("global_store_dword v253, v254, s[62:63]")
    dcount = [0]
    def dstamp(word, wg, nwg=1):
        if not dbg: return
        dcount[0] += 1
        u = dcount[0]
        e("s_cmp_lg_u32 s3, 0")
        e(f"s_cbranch_scc1 L_ds_{u}")
        e(f"s_sub_u32 s61, s2, {wg}")
        e(f"s_cmp_ge_u32 s61, {nwg}")
        e(f"s_cbranch_scc1 L_ds_{u}")
        e("s_memrealtime s[62:63]")
        e(f"s_add_u32 s61, s61, {word}")
        e("s_lshl_b32 s61, s61, 2")
        e("s_waitcnt lgkmcnt(0)")
        e("v_mov_b32 v252, s62")
        e("v_mov_b32 v251, s61")
        e("s_mov_b64 exec, 1")
        e("global_store_dword v251, v252, s[26:27]")
        e("s_mov_b64 exec, -1")
        e.label(f"L_ds_{u}")
    def pf(k):
        if not prof: return
        e("s_memtime s[64:65]")
        e("s_waitcnt lgkmcnt(0)")
        e("s_sub_u32 s66, s64, s67")
        e(f"s_add_u32 s{84+k}, s{84+k}, s66")
        e("s_mov_b32 s67, s64")

    e.l.append(HEADER.rstrip("\n"))
    e.l.append(f"; @launch grid=(256,1,1) block=(256,1,1) lds={LDS_BYTES}")
    e.l.append('.amdgcn_target "amdgcn-amd-amdhsa--gfx950"')
    e.l.append(".text")
    e.l.append(f".globl {KN}")
    e.l.append(".p2align 8")
    e.l.append(f".type {KN},@function")
    e.label(KN)
    e("s_cmp_ge_u32 s2, 256")
    e("s_cbranch_scc1 L_end")
    e("s_load_dwordx16 s[4:19], s[0:1], 0")
    e("s_load_dwordx8 s[20:27], s[0:1], 64")
    e("s_load_dwordx2 s[28:29], s[0:1], 96")
    if stamps:
        e("v_mov_b32 v254, 0")
    e("v_lshrrev_b32 v2, 6, v0")
    e("v_and_b32 v1, 63, v0")
    e("v_readfirstlane_b32 s3, v2")
    stamp(0)
    e("s_waitcnt lgkmcnt(0)")
    dstamp(0, 0)
    dstamp(13, 255)
    e("s_cmp_eq_u32 s3, 0")
    e("s_cbranch_scc1 L_qslice")
    e("s_cmp_lt_u32 s2, 64")
    e("s_cbranch_scc1 L_h_join0")
    e("s_branch L_unit_setup")

    XF, BQ = 48, 112
    T0, T1, T2, T3 = 240, 241, 242, 243
    e.label("L_qslice")
    if prio: e("s_setprio 3")
    e("s_and_b32 s40, s2, 7")
    e("s_lshl_b32 s40, s40, 5")
    e("s_lshr_b32 s41, s2, 3")
    e("s_add_u32 s40, s40, s41")
    e("s_lshr_b32 s80, s40, 7")
    e("s_and_b32 s81, s40, 127")
    e("s_cmp_eq_u32 s80, 0")
    e("s_cselect_b32 s72, s4, s14")
    e("s_cselect_b32 s73, s5, s15")
    e("s_cselect_b32 s76, s10, s20")
    e("s_cselect_b32 s77, s11, s21")
    e("s_and_b32 s73, s73, 0xffff")
    e("s_and_b32 s77, s77, 0xffff")
    e("s_mov_b32 s74, 7168")
    e("s_mov_b32 s75, 0x20000")
    e("s_mov_b32 s78, 3670016")
    e("s_mov_b32 s79, 0x20000")
    e("v_lshrrev_b32 v2, 2, v1")
    e("v_lshlrev_b32 v2, 13, v2")
    e("v_and_b32 v3, 3, v1")
    e("v_lshl_add_u32 v2, v3, 4, v2")
    e("s_lshl_b32 s41, s81, 6")
    if qloop:
        e("s_mov_b32 m0, 0")
        e("s_mov_b32 s42, 28")
        e.label("L_qdma")
        e(f"buffer_load_dwordx4 v2, s[76:79], s41 offen {wqflags} lds")
        e("s_add_u32 s41, s41, 131072")
        e("s_add_u32 m0, m0, 1024")
        e("s_sub_u32 s42, s42, 1")
        e("s_cmp_lg_u32 s42, 0")
        e("s_cbranch_scc1 L_qdma")
    else:
        for n in range(28):
            e(f"s_add_u32 s42, s41, {n*131072}")
            e(f"s_mov_b32 m0, {n*1024}")
            e("s_nop 0")
            e(f"buffer_load_dwordx4 v2, s[76:79], s42 offen {wqflags} lds")
    e("v_and_b32 v4, 7, v1")
    e("v_mul_u32_u24 v4, 896, v4")
    e("v_lshrrev_b32 v5, 4, v1")
    e("v_lshl_add_u32 v4, v5, 4, v4")
    for ks in range(14):
        e(f"buffer_load_dwordx4 v[{XF+4*ks}:{XF+4*ks+3}], v4, s[72:75], 0 offen offset:{ks*64}")
    e("v_mov_b32 v6, 0")
    e(f"global_load_dwordx2 v[{T0}:{T1}], v6, s[28:29] offset:{WS_EPOCH} sc1")
    if qfirst: e("s_barrier")
    e("v_and_b32 v3, 15, v1")
    e("v_lshrrev_b32 v6, 2, v3")
    e("v_lshlrev_b32 v6, 6, v6")
    e("v_and_b32 v7, 3, v3")
    e("v_lshl_add_u32 v6, v7, 3, v6")
    e("v_lshl_add_u32 v6, v5, 9, v6")
    e("s_waitcnt vmcnt(0)")
    stamp(6)
    e(f"v_readfirstlane_b32 s30, v{T0}")
    e(f"v_readfirstlane_b32 s31, v{T1}")
    def trread(ks):
        for ct in range(2):
            r = BQ + (ks * 2 + ct) * 4
            e(f"ds_read_b64_tr_b16 v[{r}:{r+1}], v6 offset:{ks*2048 + ct*32}")
            e(f"ds_read_b64_tr_b16 v[{r+2}:{r+3}], v6 offset:{ks*2048 + ct*32 + 256}")
    def qmf(ks):
        for ct in range(2):
            r = BQ + (ks * 2 + ct) * 4
            d = 24 + 4 * ct
            c_ = "0" if ks == 0 else f"v[{d}:{d+3}]"
            e(f"v_mfma_f32_16x16x32_bf16 v[{d}:{d+3}], v[{XF+4*ks}:{XF+4*ks+3}], v[{r}:{r+3}], {c_}")
    for ks in range(3): trread(ks)
    e("s_add_u32 s30, s30, 1")
    e("s_addc_u32 s31, s31, 0")
    for ks in range(14):
        left = min(14, ks + 3) - (ks + 1)
        e(f"s_waitcnt lgkmcnt({4*left})")
        qmf(ks)
        if ks + 3 < 14: trread(ks + 3)
    e("v_lshlrev_b32 v6, 9, v5")
    e("v_lshl_add_u32 v6, v3, 2, v6")
    e(f"v_add_u32 v6, {LDS_QT}, v6")
    e("s_nop 7")
    e("s_mov_b32 exec_hi, 0")
    for ct in range(2):
        for r in range(4):
            e(f"ds_write_b32 v6, v{24+4*ct+r} offset:{r*128 + ct*64}")
    e("s_mov_b64 exec, -1")
    e("v_lshlrev_b32 v6, 4, v1")
    e(f"v_add_u32 v6, {LDS_QT}, v6")
    e("s_waitcnt lgkmcnt(0)")
    e("ds_read_b128 v[32:35], v6")
    e("v_lshrrev_b32 v6, 3, v1")
    e("v_lshlrev_b32 v6, 14, v6")
    e("v_and_b32 v7, 7, v1")
    e("v_lshl_add_u32 v6, v7, 4, v6")
    e("s_lshl_b32 s41, s80, 17")
    e("s_lshl_b32 s42, s81, 7")
    e("s_add_u32 s41, s41, s42")
    e(f"s_add_u32 s41, s41, {WS_QG}")
    e("s_add_u32 s82, s28, s41")
    e("s_addc_u32 s83, s29, 0")
    e("v_mov_b32 v38, s30")
    e("v_mov_b32 v39, s31")
    e("s_waitcnt lgkmcnt(0)")
    e("v_cvt_pk_bf16_f32 v36, v32, v33")
    e("v_cvt_pk_bf16_f32 v37, v34, v35")
    e("global_store_dwordx4 v6, v[36:39], s[82:83] sc1")
    stamp(7)
    e("s_cmp_lt_u32 s2, 64")
    e("s_cbranch_scc1 L_helper0")

    KV = 4
    VV = 12
    KA = 13
    vM, vL, vNMC, vTK, vONE, vTINC = 18, 19, 20, 21, 22, 17
    S0, PP, TT, ACC, VB = 24, 32, 36, 48, (112, 176)
    aK, aQ = 0, 64
    e.label("L_unit_setup")
    e("s_sub_u32 s40, s2, 64")
    e("s_cmp_lt_u32 s40, 64")
    e("s_cselect_b32 s52, 1, 0")
    e("s_cselect_b32 s32, s6, s16")
    e("s_cselect_b32 s33, s7, s17")
    e("s_cselect_b32 s36, s8, s18")
    e("s_cselect_b32 s37, s9, s19")
    e("s_cselect_b32 s41, 0, 64")
    e("s_sub_u32 s40, s40, s41")
    e("s_lshl_b32 s41, s40, 21")
    e("s_add_u32 s32, s32, s41")
    e("s_addc_u32 s33, s33, 0")
    e("s_add_u32 s36, s36, s41")
    e("s_addc_u32 s37, s37, 0")
    e("s_and_b32 s33, s33, 0xffff")
    e("s_and_b32 s37, s37, 0xffff")
    e("s_mov_b32 s34, 0x200000")
    e("s_mov_b32 s35, 0x20000")
    e("s_mov_b32 s38, 0x200000")
    e("s_mov_b32 s39, 0x20000")
    e("s_lshl_b32 s43, s3, 15")
    e("v_lshrrev_b32 v2, 5, v1")
    e("v_and_b32 v3, 31, v1")
    e("v_lshlrev_b32 v23, 2, v2")
    e("v_xor_b32 v3, v3, v23")
    e("v_lshlrev_b32 v3, 4, v3")
    e("v_lshl_add_u32 v3, v2, 9, v3")
    for n in range(8):
        cst = (8 * (n & 1) + ((n >> 1) & 3)) * 16
        e(f"v_xor_b32 v{KV+n}, {cst}, v3")
    e("v_lshrrev_b32 v2, 4, v1")
    e("v_and_b32 v3, 15, v1")
    e("v_lshlrev_b32 v23, 4, v3")
    e(f"v_lshl_add_u32 v{VV}, v2, 9, v23")

    def issueK(slot, soff, lo=0, hi=16):
        for n in range(lo, hi):
            if n % 4 == 0:
                e(f"s_add_u32 s42, {soff}, {(n//4)*4096}")
                e(f"s_add_u32 m0, s43, {slot*16384 + (n//4)*4096}")
                e("s_nop 0")
            e(f"buffer_load_dwordx4 v{KV + (n & 7)}, s[32:35], s42 offen offset:{(n%4)*1024} {kflags} lds")
    def issueV(slot, soff, lo=0, hi=8):
        for i in range(lo, hi):
            if i % 2 == 0:
                e(f"s_add_u32 s42, {soff}, {(i//2)*4096}")
            for j in range(2):
                r = VB[slot] + (i * 2 + j) * 4
                e(f"buffer_load_dwordx4 v[{r}:{r+3}], v{VV}, s[36:39], s42 offen offset:{(i%2)*2048 + j*256} {vflags}")
    def prefetch():
        e("s_lshl_b32 s40, s3, 14")
        e("s_add_u32 s47, s40, 0x10000")
        issueK(0, "s40")
        if pace: e("s_waitcnt vmcnt(8)")
        issueV(0, "s40")
        if pace: e("s_waitcnt vmcnt(8)")
        issueK(1, "s47")
        if pace: e("s_waitcnt vmcnt(8)")
        issueV(1, "s47")

    e("s_cmp_eq_u32 s3, 0")
    e("s_cbranch_scc1 L_u_rest")
    if qfirst: e("s_barrier")
    prefetch()
    stamp(1)
    e.label("L_u_rest")
    e("s_sub_u32 s40, s2, 64")
    e("s_cmp_lg_u32 s52, 0")
    e("s_cselect_b32 s41, 0, 64")
    e("s_sub_u32 s40, s40, s41")
    e("s_cmp_lg_u32 s52, 0")
    e("s_cselect_b32 s41, 3, 4")
    e("s_cselect_b32 s47, 7, 15")
    e("s_cselect_b32 s54, 11, 10")
    e("s_cselect_b32 s55, 0, 0x20000")
    e("s_cselect_b32 s68, 10, 9")
    e("s_cselect_b32 s69, 0, 0x10000")
    e("s_lshr_b32 s42, s40, s41")
    e("s_and_b32 s53, s40, s47")
    e("s_lshl_b32 s41, s53, s54")
    e("s_lshl_b32 s47, s42, 14")
    e("s_add_u32 s41, s41, s47")
    e("s_add_u32 s41, s41, s55")
    e(f"s_add_u32 s41, s41, {WS_QG}")
    e("s_add_u32 s48, s28, s41")
    e("s_addc_u32 s49, s29, 0")
    e("s_lshl_b32 s41, s53, s68")
    e("s_lshl_b32 s47, s42, 13")
    e("s_add_u32 s41, s41, s47")
    e("s_add_u32 s41, s41, s69")
    e(f"s_add_u32 s41, s41, {WS_O}")
    e("s_add_u32 s50, s28, s41")
    e("s_addc_u32 s51, s29, 0")
    e(f"s_mov_b32 s44, {SCALE}")
    e("s_mov_b32 s45, 0x05040100")
    e("s_mov_b32 s46, 0x07060302")
    e("v_and_b32 v23, 3, v3")
    e("v_lshlrev_b32 v23, 2, v23")
    e(f"v_lshrrev_b32 v{T2}, 2, v3")
    e(f"v_add_u32 v23, v23, v{T2}")
    e("v_lshlrev_b32 v23, 9, v23")
    e("v_add_u32 v23, s43, v23")
    for jj in range(4):
        e(f"v_add_u32 v{T2}, {4*jj}, v2")
        e(f"v_xor_b32 v{T2}, v{T2}, v3")
        e(f"v_lshl_add_u32 v{KA+jj}, v{T2}, 4, v23")
    e(f"v_mov_b32 v{vTK}, {LDS_TK}")
    e(f"v_mov_b32 v{vONE}, 1")
    e("v_cmp_eq_u32 vcc, 0, v1")
    e(f"v_mov_b32 v{vM}, 0xff800000")
    e(f"v_mov_b32 v{vL}, 0")
    e(f"v_cndmask_b32 v{vTINC}, 0, 1, vcc")
    e(f"v_mov_b32 v{vNMC}, 0")
    for i in range(64):
        e(f"v_mov_b32 v{ACC+i}, 0")
    e("s_cmp_lg_u32 s3, 0")
    e("s_cbranch_scc1 L_u_bar")
    e.c("---- wave 0: wait for this unit's q granules")
    e("v_lshlrev_b32 v2, 4, v1")
    e("s_cmp_lg_u32 s52, 0")
    e("s_cselect_b32 s41, 1024, 0")
    e("v_add_u32 v3, s41, v2")
    e(f"s_mov_b32 s56, {spin}")
    e.label("L_u_poll")
    e(f"global_load_dwordx4 v[24:27], v2, s[48:49] sc1")
    e(f"global_load_dwordx4 v[28:31], v3, s[48:49] sc1")
    e("s_waitcnt vmcnt(0)")
    e("v_cmp_eq_u32 vcc, s30, v26")
    e("v_cmp_eq_u32 s[54:55], s31, v27")
    e("v_cmp_eq_u32 s[68:69], s30, v30")
    e("v_cmp_eq_u32 s[70:71], s31, v31")
    e("s_nop 1")
    e("s_and_b64 s[54:55], s[54:55], vcc")
    e("s_and_b64 s[68:69], s[68:69], s[70:71]")
    e("s_and_b64 s[54:55], s[54:55], s[68:69]")
    e("s_cmp_eq_u64 s[54:55], -1")
    e("s_cbranch_scc1 L_u_qready")
    if sleep_q: e(f"s_sleep {sleep_q}")
    e("s_sub_u32 s56, s56, 1")
    e("s_cmp_lg_u32 s56, 0")
    e("s_cbranch_scc1 L_u_poll")
    e.label("L_u_qready")
    e("v_lshlrev_b32 v2, 3, v1")
    e(f"v_add_u32 v2, {LDS_Q}, v2")
    e("ds_write_b64 v2, v[24:25]")
    e("ds_write_b64 v2, v[28:29] offset:512")
    e("v_mov_b32 v2, 8")
    e("v_mov_b32 v3, s30")
    e(f"ds_write_b64 v{vTK}, v[2:3]")
    stamp(8)
    if prio: e("s_setprio 0")
    e("s_waitcnt lgkmcnt(0)")
    e("s_barrier")
    prefetch()
    stamp(1)
    e("s_branch L_u_go")
    e.label("L_u_bar")
    e("s_barrier")
    e.label("L_u_go")
    dstamp(12, 64)
    stamp(2)
    e("v_and_b32 v2, 1, v1")
    e("v_lshlrev_b32 v2, 9, v2")
    e("v_lshrrev_b32 v3, 4, v1")
    e("v_lshl_add_u32 v2, v3, 4, v2")
    e(f"v_add_u32 v2, {LDS_Q}, v2")
    for j in range(8):
        e(f"ds_read_b128 a[{aQ+4*j}:{aQ+4*j+3}], v2 offset:{j*64}")
    if win:
        e(f"ds_read_b32 v{vPV}, v{vTK} offset:4")
        e(f"s_add_u32 s92, s28, {WS_PROG}")
        e("s_addc_u32 s93, s29, 0")
        e("s_sub_u32 s94, s2, 64")
        e(f"v_and_b32 v{vPA}, 7, v1")
        e(f"v_lshlrev_b32 v{vPA}, 2, v{vPA}")
        e("s_lshl_b32 s41, s3, 7")
        e(f"v_add_u32 v{vPA}, s41, v{vPA}")
        e("s_waitcnt lgkmcnt(0)")
        e(f"v_readfirstlane_b32 s95, v{vPV}")
        e("s_nop 3")
        e("s_lshl_b32 s95, s95, 8")

    def prog_min():
        e(f"v_xor_b32 v{vPV}, s95, v{vPV}")
        e(f"v_cmp_gt_u32 vcc, 256, v{vPV}")
        e("s_nop 1")
        e(f"v_cndmask_b32 v{vPV}, 8, v{vPV}, vcc")
        e("s_nop 1")
        e(f"v_min_u32_dpp v{vPV}, v{vPV}, v{vPV} quad_perm:[1,0,3,2] row_mask:0xf bank_mask:0xf")
        e("s_nop 1")
        e(f"v_min_u32_dpp v{vPV}, v{vPV}, v{vPV} quad_perm:[2,3,0,1] row_mask:0xf bank_mask:0xf")
        e("s_nop 1")
        e(f"v_min_u32_dpp v{vPV}, v{vPV}, v{vPV} row_half_mirror row_mask:0xf bank_mask:0xf")
        e("s_nop 0")
        e(f"v_readfirstlane_b32 s68, v{vPV}")
        e("s_nop 3")
        e(f"s_add_u32 s68, s68, {win}")
    def prog_gate(u):
        e(f"s_cmp_ge_u32 s41, {NT - 8}")
        e(f"s_cbranch_scc1 L_go_{u}")
        prog_min()
        e("s_cmp_le_u32 s41, s68")
        e(f"s_cbranch_scc1 L_go_{u}")
        e(f"s_mov_b32 s56, {spin}")
        e.label(f"L_gate_{u}")
        e(f"global_load_dword v{vPV}, v{vPA}, s[92:93] sc1")
        e("s_waitcnt vmcnt(0)")
        prog_min()
        e("s_cmp_le_u32 s41, s68")
        e(f"s_cbranch_scc1 L_go_{u}")
        e("s_sleep 2")
        e("s_sub_u32 s56, s56, 1")
        e("s_cmp_lg_u32 s56, 0")
        e(f"s_cbranch_scc1 L_gate_{u}")
        e.label(f"L_go_{u}")
    def prog_publish(u):
        e("s_cmp_ge_u32 s94, 8")
        e(f"s_cbranch_scc1 L_nopub_{u}")
        if not puball:
            e("s_cmp_lg_u32 s3, 0")
            e(f"s_cbranch_scc1 L_nopub_{u}")
        e("s_min_u32 s68, s41, 255")
        e("s_or_b32 s68, s68, s95")
        e("s_lshl_b32 s54, s94, 2")
        e(f"v_lshlrev_b32 v{T2}, 7, v1")
        e(f"v_add_u32 v{T2}, s54, v{T2}")
        e(f"v_mov_b32 v{T3}, s68")
        e("s_mov_b64 exec, 15")
        e(f"global_store_dword v{T2}, v{T3}, s[92:93] sc1")
        e("s_mov_b64 exec, -1")
        e.label(f"L_nopub_{u}")

    uid = [0]
    def step(slot, kind):
        uid[0] += 1
        u = uid[0]
        steady = kind == "steady"
        if steady and steptime:
            e("s_memrealtime s[62:63]")
            e(f"s_lshr_b32 s68, s57, {1 if nact <= 2 else 0}")
            e("s_min_u32 s68, s68, 39")
            e("s_add_u32 s68, s68, 24")
            e("s_mov_b32 m0, s68")
            e("s_waitcnt lgkmcnt(0)")
            e("v_writelane_b32 v254, s62, m0")
            e("s_add_u32 s57, s57, 1")
        if steady: pf(6)
        if mode == "alt":
            wk = {'first0':48, 'first1':16, 'steady':0}[kind]
            wv = {'first0':32, 'first1':0, 'steady':0}[kind]
        else:
            wk = {'first0':48, 'first1':16, 'steady':16}[kind]
            wv = {'first0':32, 'first1':16, 'steady':16}[kind]
        tick = kind != "first0"
        if tick:
            if nact < 4 and kind == "first1":
                e(f"s_cmp_ge_u32 s3, {nact}")
                e(f"s_cbranch_scc1 L_notick_{u}")
            e(f"ds_add_rtn_u32 v{T3}, v{vTK}, v{vTINC}")
            if nact < 4 and kind == "first1":
                e.label(f"L_notick_{u}")
        if False:
            pass
        elif earlyv and steady and mode == "alt" and not split:
            e("s_cmp_eq_u32 s71, 0")
            e(f"s_cbranch_scc1 L_ev0_{u}")
            e("s_waitcnt vmcnt(16)")
            e(f"s_branch L_ev1_{u}")
            e.label(f"L_ev0_{u}")
            e("s_waitcnt vmcnt(0)")
            if win: e(f"global_load_dword v{vPV}, v{vPA}, s[92:93] sc1")
            issueV(slot, "s40")
            e.label(f"L_ev1_{u}")
        else:
            e(f"s_waitcnt vmcnt({wk})")
        if steady: pf(0)
        if mode == "alt" and steady and not (earlyv and not split):
            if split:
                if split in (1, 3):
                    issueK(slot, "s40", 8, 16)
                    e("s_waitcnt vmcnt(0)")
                if split in (1, 2): issueV(slot, "s40", 0, 4)
                else: issueV(slot, "s40")
            else:
                issueV(slot, "s40")
        if steady: pf(1)
        so = slot * 16384
        def rd(j):
            for t in range(2):
                r = aK + (j * 2 + t) * 4
                e(f"ds_read_b128 a[{r}:{r+3}], v{KA + (j & 3)} offset:{so + t*8192 + (j>>2)*256}")
        def mf(j):
            for t in range(2):
                r = aK + (j * 2 + t) * 4
                c_ = "0" if j == 0 else f"v[{S0+4*t}:{S0+4*t+3}]"
                e(f"v_mfma_f32_16x16x32_bf16 v[{S0+4*t}:{S0+4*t+3}], a[{r}:{r+3}], a[{aQ+4*j}:{aQ+4*j+3}], {c_}")
        for j in range(6): rd(j)
        e("s_waitcnt lgkmcnt(8)")
        mf(0); mf(1)
        rd(6); rd(7)
        e("s_waitcnt lgkmcnt(8)")
        mf(2); mf(3)
        e("s_waitcnt lgkmcnt(4)")
        mf(4); mf(5)
        e("s_waitcnt lgkmcnt(0)")
        mf(6); mf(7)
        if tick:
            e(f"v_readfirstlane_b32 s41, v{T3}")
            if nact < 4 and kind == "first1":
                e(f"s_cmp_ge_u32 s3, {nact}")
                e(f"s_cselect_b32 s41, {NT}, s41")

        if mode == "mid" and tick:
            e(f"s_cmp_ge_u32 s41, {NT}")
            e(f"s_cbranch_scc1 L_last_{u}")
            e("s_lshl_b32 s40, s41, 14")
            issueK(slot ^ 1, "s40")
        def softmax_pv(tag, wv_, after_v, after_pv):
            e("s_nop 7")
            e(f"v_max3_f32 v{T0}, v{S0}, v{S0+1}, v{S0+2}")
            e(f"v_max3_f32 v{T1}, v{S0+3}, v{S0+4}, v{S0+5}")
            e(f"v_max3_f32 v{T0}, v{S0+6}, v{S0+7}, v{T0}")
            e(f"v_max_f32 v{T0}, v{T0}, v{T1}")
            e(f"v_mov_b32 v{T1}, v{T0}")
            e("s_nop 1")
            e(f"v_permlane16_swap_b32 v{T1}, v{T0}")
            e(f"v_max_f32 v{T0}, v{T0}, v{T1}")
            e(f"v_mov_b32 v{T1}, v{T0}")
            e("s_nop 1")
            e(f"v_permlane32_swap_b32 v{T1}, v{T0}")
            e(f"v_max3_f32 v{T0}, v{T0}, v{T1}, v{vM}")
            e(f"v_cmp_gt_f32 vcc, v{T0}, v{vM}")
            e(f"s_cbranch_vccz L_norescale_{tag}")
            e(f"v_sub_f32 v{T1}, v{vM}, v{T0}")
            e(f"v_mul_f32 v{T1}, s44, v{T1}")
            e(f"v_exp_f32 v{T1}, v{T1}")
            e(f"v_mov_b32 v{vM}, v{T0}")
            e(f"v_mul_f32 v{vNMC}, s44, v{T0}")
            e(f"v_mul_f32 v{vL}, v{vL}, v{T1}")
            e(f"v_sub_f32 v{vNMC}, 0, v{vNMC}")
            for i in range(64):
                e(f"v_mul_f32 v{ACC+i}, v{ACC+i}, v{T1}")
            e.label(f"L_norescale_{tag}")
            for i in range(8):
                e(f"v_fma_f32 v{S0+i}, v{S0+i}, s44, v{vNMC}")
            for i in range(8):
                e(f"v_exp_f32 v{S0+i}, v{S0+i}")
            e("s_nop 0")
            e(f"v_add_f32 v{T0}, v{S0}, v{S0+1}")
            e(f"v_add_f32 v{T1}, v{S0+2}, v{S0+3}")
            e(f"v_add_f32 v{T2}, v{S0+4}, v{S0+5}")
            e(f"v_cvt_pk_bf16_f32 v{PP}, v{S0}, v{S0+1}")
            e(f"v_add_f32 v{T0}, v{T0}, v{T1}")
            e(f"v_add_f32 v{T1}, v{S0+6}, v{S0+7}")
            e(f"v_cvt_pk_bf16_f32 v{PP+1}, v{S0+2}, v{S0+3}")
            e(f"v_add_f32 v{T2}, v{T2}, v{T1}")
            e(f"v_cvt_pk_bf16_f32 v{PP+2}, v{S0+4}, v{S0+5}")
            e(f"v_add_f32 v{T0}, v{T0}, v{T2}")
            e(f"v_cvt_pk_bf16_f32 v{PP+3}, v{S0+6}, v{S0+7}")
            e(f"v_add_f32 v{vL}, v{vL}, v{T0}")
            if steady: pf(2)
            e(f"s_waitcnt vmcnt({wv_})")
            if steady and split in (1, 2) and mode == "alt":
                issueV(slot, "s40", 4, 8)
                e("s_waitcnt vmcnt(0)")
            if steady: pf(3)
            after_v()
            if steady: pf(4)
            vb = VB[slot]
            def perms(j, ee, tb):
                sel = "s45" if (ee & 1) == 0 else "s46"
                for ip in range(4):
                    lo = vb + ((2 * ip) * 2 + j) * 4 + (ee >> 1)
                    hi = vb + ((2 * ip + 1) * 2 + j) * 4 + (ee >> 1)
                    e(f"v_perm_b32 v{tb+ip}, v{hi}, v{lo}, {sel}")
            seq = [(j, ee) for j in range(2) for ee in range(8)]
            perms(*seq[0], TT)
            for idx, (j, ee) in enumerate(seq):
                tb = TT + 4 * (idx % 3)
                if idx + 1 < len(seq):
                    perms(*seq[idx + 1], TT + 4 * ((idx + 1) % 3))
                else:
                    e("s_nop 1")
                a = ACC + (j * 8 + ee) * 4
                e(f"v_mfma_f32_16x16x32_bf16 v[{a}:{a+3}], v[{tb}:{tb+3}], v[{PP}:{PP+3}], v[{a}:{a+3}]")
            after_pv()
            if steady: pf(5)
        if mode == "alt":
            def av():
                if kind != "first0":
                    if win: prog_publish(u)
                    e(f"s_cmp_ge_u32 s41, {NT}")
                    e(f"s_cbranch_scc1 L_nok_{u}")
                    if win and steady: prog_gate(u)
                    e("s_lshl_b32 s40, s41, 14")
                    if split in (1, 3): issueK(slot ^ 1, "s40", 0, 8)
                    else: issueK(slot ^ 1, "s40")
                    if earlyv and not split:
                        e(f"s_cmp_ge_u32 s41, {earlyv}")
                        e("s_cselect_b32 s71, 1, 0")
                        e(f"s_cbranch_scc0 L_nok_{u}")
                        issueV(slot ^ 1, "s40")
                    e.label(f"L_nok_{u}")
            softmax_pv(u, wv, av, lambda: None)
            if kind != "first0":
                e(f"s_cmp_ge_u32 s41, {NT}")
                e("s_cbranch_scc1 L_u_done")
        else:
            if kind == "first0":
                softmax_pv(u, wv, lambda: None, lambda: None)
            else:
                softmax_pv(u, wv, lambda: None, lambda: issueV(slot ^ 1, "s40"))
                e(f"s_branch L_next_{u}")
                e.label(f"L_last_{u}")
                softmax_pv(f"{u}b", 0, lambda: None, lambda: None)
                e("s_branch L_u_done")
                e.label(f"L_next_{u}")

    e("s_mov_b32 s71, 0")
    e("s_waitcnt lgkmcnt(0)")
    step(0, "first0")
    step(1, "first1")
    if prof:
        for k in range(8): e(f"s_mov_b32 s{84+k}, 0")
        e("s_memtime s[64:65]")
        e("s_waitcnt lgkmcnt(0)")
        e("s_mov_b32 s67, s64")
    if steptime: e("s_mov_b32 s57, 0")
    e.label("L_u_loop")
    step(0, "steady")
    step(1, "steady")
    e("s_branch L_u_loop")
    e.label("L_u_done")
    stamp(3)
    if prof:
        for k in range(7): e(f"v_writelane_b32 v254, s{84+k}, {16+k}")
    if steptime:
        e("v_writelane_b32 v254, s57, 23")
        e(f"s_mov_b32 s68, {1 if nact <= 2 else 0}")
        e("v_writelane_b32 v254, s68, 15")
    e.c("---- every wave leaves (m, l) and its unscaled accumulators in LDS")
    e("s_cmp_lg_u32 s3, 0")
    e("s_cbranch_scc1 L_u_noh")
    e(f"v_lshlrev_b32 v{vTINC}, 3, v1")
    e(f"s_add_u32 s58, s28, {WS_H}")
    e("s_addc_u32 s59, s29, 0")
    e(f"global_load_dwordx2 v[{T2}:{T3}], v{vTINC}, s[58:59] sc1")
    e.label("L_u_noh")
    e(f"v_mov_b32 v{T1}, v{vL}")
    e("s_nop 1")
    e(f"v_permlane16_swap_b32 v{T1}, v{vL}")
    e(f"v_add_f32 v{vL}, v{vL}, v{T1}")
    e(f"v_mov_b32 v{T1}, v{vL}")
    e("s_nop 1")
    e(f"v_permlane32_swap_b32 v{T1}, v{vL}")
    e(f"v_add_f32 v{vL}, v{vL}, v{T1}")
    e("v_and_b32 v2, 1, v1")
    e("v_lshlrev_b32 v3, 3, v2")
    e(f"v_add_u32 v3, {LDS_ST}, v3")
    e("s_lshl_b32 s41, s3, 4")
    e("v_add_u32 v3, s41, v3")
    e("v_lshlrev_b32 v2, 10, v2")
    e("v_lshrrev_b32 v23, 4, v1")
    e("v_lshl_add_u32 v2, v23, 7, v2")
    e("v_add_u32 v2, s43, v2")
    e("s_mov_b32 exec_lo, 0x00030003")
    e("s_mov_b32 exec_hi, 0x00030003")
    for j in range(2):
        for r in range(4):
            for ee in range(0, 8, 2):
                o0 = j * 128 + r * 8 + ee
                e(f"ds_write2_b32 v2, v{ACC + (j*8+ee)*4 + r}, v{ACC + (j*8+ee+1)*4 + r} offset0:{o0} offset1:{o0+1}")
    e("s_mov_b64 exec, 3")
    e(f"ds_write_b64 v3, v[{vM}:{vL}]")
    e("s_mov_b64 exec, -1")
    e("s_waitcnt lgkmcnt(0)")
    e("s_barrier")
    stamp(9)
    e("s_cmp_lg_u32 s3, 0")
    e("s_cbranch_scc1 L_u_exit")
    e("v_lshrrev_b32 v2, 5, v1")
    e("v_lshlrev_b32 v2, 3, v2")
    e(f"v_add_u32 v2, {LDS_ST}, v2")
    for w in range(4):
        e(f"ds_read_b64 v[{S0+2*w}:{S0+2*w+1}], v2 offset:{w*16}")
    e("v_lshlrev_b32 v2, 5, v1")
    e("v_add_u32 v3, 0x10000, v2")
    for w in range(4):
        vr = "v2" if w < 2 else "v3"
        e(f"ds_read_b128 v[{ACC+8*w}:{ACC+8*w+3}], {vr} offset:{(w&1)*32768}")
        e(f"ds_read_b128 v[{ACC+8*w+4}:{ACC+8*w+7}], {vr} offset:{(w&1)*32768+16}")
    e("s_waitcnt lgkmcnt(8)")
    e(f"v_max3_f32 v{T0}, v{S0}, v{S0+2}, v{S0+4}")
    e(f"v_max_f32 v{T0}, v{T0}, v{S0+6}")
    for w in range(4):
        e(f"v_sub_f32 v{S0+2*w}, v{S0+2*w}, v{T0}")
    for w in range(4):
        e(f"v_mul_f32 v{S0+2*w}, s44, v{S0+2*w}")
    for w in range(4):
        e(f"v_exp_f32 v{S0+2*w}, v{S0+2*w}")
    e("s_nop 0")
    e(f"v_mul_f32 v{T1}, v{S0}, v{S0+1}")
    e(f"v_fma_f32 v{T1}, v{S0+2}, v{S0+3}, v{T1}")
    e(f"v_fma_f32 v{T1}, v{S0+4}, v{S0+5}, v{T1}")
    e(f"v_fma_f32 v{T1}, v{S0+6}, v{S0+7}, v{T1}")
    e(f"v_rcp_f32 v{T1}, v{T1}")
    e("s_nop 0")
    for w in range(4):
        e(f"v_mul_f32 v{S0+2*w}, v{S0+2*w}, v{T1}")
    e("s_waitcnt lgkmcnt(0)")
    for i in range(8):
        e(f"v_mul_f32 v{ACC+i}, v{ACC+i}, v{S0}")
    for w in range(1, 4):
        for i in range(8):
            e(f"v_fma_f32 v{ACC+i}, v{ACC+8*w+i}, v{S0+2*w}, v{ACC+i}")
    for i in range(4):
        e(f"v_cvt_pk_bf16_f32 v{PP+i}, v{ACC+2*i}, v{ACC+2*i+1}")
    e("v_lshlrev_b32 v2, 4, v1")
    e("s_cmp_lg_u32 s52, 0")
    e("s_cbranch_scc1 L_u_storeA")
    e("s_mov_b32 exec_hi, 0")
    e.label("L_u_storeA")
    e(f"global_store_dwordx4 v2, v[{PP}:{PP+3}], s[50:51] sc1")
    e("s_mov_b64 exec, -1")
    e("s_cmp_lg_u32 s52, 0")
    e("s_cselect_b32 s41, 1, 2")
    e("s_cselect_b32 s47, 1, 3")
    e("s_cselect_b32 s54, 0, 4")
    e("s_lshr_b32 s41, s53, s41")
    e("s_add_u32 s41, s41, s54")
    e("s_lshl_b32 s41, s41, 7")
    e("s_and_b32 s47, s53, s47")
    e("s_lshl_b32 s47, s47, 2")
    e("s_add_u32 s41, s41, s47")
    e("v_lshlrev_b32 v2, 10, v1")
    e("v_add_u32 v2, s41, v2")
    e(f"s_mov_b32 s56, {spin}")
    e.label("L_u_hchk")
    e("s_waitcnt vmcnt(0)")
    e(f"v_cmp_eq_u32 vcc, s30, v{T2}")
    e(f"v_cmp_eq_u32 s[54:55], s31, v{T3}")
    e("s_nop 1")
    e("s_and_b64 s[54:55], s[54:55], vcc")
    e("s_cmp_eq_u64 s[54:55], -1")
    e("s_cbranch_scc1 L_u_sig")
    e(f"global_load_dwordx2 v[{T2}:{T3}], v{vTINC}, s[58:59] sc1")
    e("s_sub_u32 s56, s56, 1")
    e("s_cmp_lg_u32 s56, 0")
    e("s_cbranch_scc1 L_u_hchk")
    e.label("L_u_sig")
    stamp(10)
    e(f"s_add_u32 s58, s28, {WS_REP}")
    e("s_addc_u32 s59, s29, 0")
    e(f"s_mov_b64 exec, {(1 << nrep) - 1}")
    e(f"global_atomic_add v2, v{vONE}, s[58:59] sc1")
    e("s_mov_b64 exec, -1")
    e.label("L_u_exit")
    dstamp(4, 128, 8)
    stamp(4)
    stamp_flush()
    e("s_endpgm")

    WB, QA = 112, 48
    e.label("L_helper0")
    e.c("---- wave 0 of a helper: clear the replica line, then say so")
    e("s_lshl_b32 s47, s2, 7")
    e(f"s_add_u32 s47, s47, {WS_REP}")
    e("s_add_u32 s58, s28, s47")
    e("s_addc_u32 s59, s29, 0")
    e(f"s_cmp_ge_u32 s2, {8 * nrep}")
    e("s_cbranch_scc1 L_h_nozero")
    e("v_and_b32 v6, 31, v1")
    e("v_lshlrev_b32 v6, 2, v6")
    e("v_mov_b32 v7, 0")
    e("global_store_dword v6, v7, s[58:59] sc1")
    e.label("L_h_nozero")
    e("s_waitcnt vmcnt(0)")
    e("s_lshl_b32 s47, s2, 3")
    e(f"s_add_u32 s47, s47, {WS_H}")
    e("v_mov_b32 v6, s47")
    e("s_mov_b64 exec, 1")
    e("global_store_dwordx2 v6, v[38:39], s[28:29] sc1")
    e("s_mov_b64 exec, -1")
    if prio: e("s_setprio 0")
    stamp(2)
    e("s_branch L_h_join")
    e.label("L_h_join0")
    if qfirst: e("s_barrier")
    e.label("L_h_join")
    e("s_barrier")
    if womap:
        e("s_lshr_b32 s53, s2, 3")
        e("s_and_b32 s52, s2, 7")
        e("s_lshr_b32 s47, s53, 2")
        e("s_lshl_b32 s54, s52, 1")
        e("s_add_u32 s54, s54, s47")
        e("s_add_u32 s55, s52, 6")
        e("s_cmp_ge_u32 s52, 6")
        e("s_cselect_b32 s54, s55, s54")
        e("s_cselect_b32 s47, s47, 0")
        e("s_cmp_lg_u32 s47, 0")
        e("s_cbranch_scc1 L_h_keeper")
        e("s_cmp_ge_u32 s54, 7")
        e("s_cselect_b32 s40, 1, 0")
        e("s_cselect_b32 s47, 7, 0")
        e("s_sub_u32 s54, s54, s47")
        e("s_lshl_b32 s54, s54, 2")
        e("s_and_b32 s47, s53, 3")
        e("s_add_u32 s41, s54, s47")
    else:
        e("s_lshr_b32 s53, s2, 3")
        e("s_and_b32 s52, s2, 7")
        e("s_mul_i32 s52, s52, 7")
        e("s_add_u32 s52, s52, s53")
        e("s_cmp_eq_u32 s53, 7")
        e("s_cbranch_scc1 L_h_keeper")
        e("s_cmp_ge_u32 s52, 28")
        e("s_cselect_b32 s40, 1, 0")
        e("s_cselect_b32 s47, 28, 0")
        e("s_sub_u32 s41, s52, s47")
    e(f"s_and_b32 s47, s41, {nrep - 1}")
    e("s_lshl_b32 s47, s47, 3")
    e("s_lshl_b32 s58, s40, 2")
    e("s_add_u32 s47, s47, s58")
    e("s_add_u32 s47, s47, s3")
    e("s_lshl_b32 s47, s47, 7")
    e(f"s_add_u32 s47, s47, {WS_REP}")
    e("s_add_u32 s58, s28, s47")
    e("s_addc_u32 s59, s29, 0")
    e("s_cmp_eq_u32 s40, 0")
    e("s_cselect_b32 s36, s12, s22")
    e("s_cselect_b32 s37, s13, s23")
    e("s_and_b32 s37, s37, 0xffff")
    e("s_mov_b32 s38, 3670016")
    e("s_mov_b32 s39, 0x20000")
    e("v_lshrrev_b32 v2, 4, v1")
    e("v_and_b32 v3, 15, v1")
    e("v_lshrrev_b32 v6, 1, v1")
    e("v_mul_u32_u24 v6, 896, v6")
    e("v_and_b32 v7, 1, v1")
    e("v_lshl_add_u32 v6, v7, 4, v6")
    e("s_mul_i32 s42, s3, 917504")
    e("s_lshl_b32 s47, s41, 5")
    e("s_add_u32 s42, s42, s47")
    e("s_lshl_b32 s43, s3, 15")
    for n in range(32):
        e(f"s_add_u32 s47, s42, {n*32*896}")
        e(f"s_add_u32 m0, s43, {n*1024}")
        e("s_nop 0")
        e(f"buffer_load_dwordx4 v6, s[36:39], s47 offen {woflags} lds")
    e("v_lshrrev_b32 v7, 2, v3")
    e("v_lshlrev_b32 v7, 5, v7")
    e("v_and_b32 v8, 3, v3")
    e("v_lshl_add_u32 v7, v8, 3, v7")
    e("v_lshl_add_u32 v7, v2, 8, v7")
    e("v_add_u32 v7, s43, v7")
    e("s_waitcnt vmcnt(0)")
    stamp(3)
    for ks in range(32):
        e(f"ds_read_b64_tr_b16 a[{4*ks}:{4*ks+1}], v7 offset:{ks*1024}")
        e(f"ds_read_b64_tr_b16 a[{4*ks+2}:{4*ks+3}], v7 offset:{ks*1024+128}")
        if ks % 4 == 3:
            e("s_waitcnt lgkmcnt(0)")
    e("v_and_b32 v9, 3, v1")
    e("v_lshlrev_b32 v9, 2, v9")
    e("s_lshl_b32 s47, s40, 16")
    e(f"s_add_u32 s47, s47, {WS_O}")
    e("s_add_u32 s48, s28, s47")
    e("s_addc_u32 s49, s29, 0")
    e("v_and_b32 v10, 7, v1")
    e("v_lshlrev_b32 v10, 13, v10")
    e("v_lshl_add_u32 v10, v2, 4, v10")
    e("s_lshl_b32 s47, s3, 11")
    e("v_add_u32 v10, s47, v10")
    for hh in range(4):
        e("s_cmp_eq_u32 s40, 0")
        e(f"s_cselect_b32 s{72+hh}, {hh >> 1}, {hh}")
    e("s_mov_b32 s57, 15")
    e(f"s_mov_b32 s56, {spin}")
    e.label("L_h_poll")
    e("global_load_dword v11, v9, s[58:59] sc1")
    e("s_waitcnt vmcnt(0)")
    for hh in range(4):
        e(f"s_bitcmp1_b32 s57, {hh}")
        e(f"s_cbranch_scc0 L_h_skip{hh}")
        e(f"v_readlane_b32 s68, v11, s{72+hh}")
        e("s_nop 3")
        e("s_cmp_lt_u32 s68, 8")
        e(f"s_cbranch_scc1 L_h_skip{hh}")
        e(f"s_bitset0_b32 s57, {hh}")
        e("s_mov_b32 exec_lo, 0x00ff00ff")
        e("s_mov_b32 exec_hi, 0x00ff00ff")
        for ks in range(8 * hh, 8 * hh + 8):
            r = WB + 4 * ks
            e(f"global_load_dwordx4 v[{r}:{r+3}], v10, s[48:49] offset:{ks*64} sc1")
        e("s_mov_b64 exec, -1")
        e.label(f"L_h_skip{hh}")
    e("s_cmp_eq_u32 s57, 0")
    e("s_cbranch_scc1 L_h_ready")
    if sleep_o: e(f"s_sleep {sleep_o}")
    e("s_sub_u32 s56, s56, 1")
    e("s_cmp_lg_u32 s56, 0")
    e("s_cbranch_scc1 L_h_poll")
    e.label("L_h_ready")
    stamp(4)
    e("s_waitcnt vmcnt(0)")
    stamp(11)
    for ks in range(32):
        r = WB + 4 * ks
        a = QA + 4 * (ks % 4)
        c_ = "0" if ks < 4 else f"v[{a}:{a+3}]"
        e(f"v_mfma_f32_16x16x32_bf16 v[{a}:{a+3}], v[{r}:{r+3}], a[{4*ks}:{4*ks+3}], {c_}")
    e("v_lshlrev_b32 v6, 8, v2")
    e("v_lshl_add_u32 v6, v3, 2, v6")
    e("s_lshl_b32 s47, s3, 9")
    e(f"s_add_u32 s47, s47, {LDS_RED}")
    e("v_add_u32 v6, s47, v6")
    e("s_nop 7")
    for i in range(4):
        e(f"v_add_f32 v{QA+i}, v{QA+i}, v{QA+4+i}")
        e(f"v_add_f32 v{QA+8+i}, v{QA+8+i}, v{QA+12+i}")
    for i in range(4):
        e(f"v_add_f32 v{QA+i}, v{QA+i}, v{QA+8+i}")
    e("s_mov_b32 exec_hi, 0")
    for r in range(4):
        e(f"ds_write_b32 v6, v{QA+r} offset:{r*64}")
    e("s_mov_b64 exec, -1")
    e("s_waitcnt lgkmcnt(0)")
    e("s_barrier")
    e("s_cmp_lg_u32 s3, 0")
    e("s_cbranch_scc1 L_h_exit")
    e("v_lshlrev_b32 v6, 3, v1")
    e(f"v_add_u32 v6, {LDS_RED}, v6")
    for w in range(4):
        e(f"ds_read_b64 v[{QA+2*w}:{QA+2*w+1}], v6 offset:{w*512}")
    e("v_lshrrev_b32 v6, 3, v1")
    e("v_mul_u32_u24 v6, 1792, v6")
    e("v_and_b32 v7, 7, v1")
    e("v_lshl_add_u32 v6, v7, 2, v6")
    e("s_mul_i32 s47, s40, 896")
    e("s_lshl_b32 s48, s41, 5")
    e("s_add_u32 s47, s47, s48")
    e("v_add_u32 v6, s47, v6")
    e("s_waitcnt lgkmcnt(0)")
    e(f"v_add_f32 v{QA}, v{QA}, v{QA+2}")
    e(f"v_add_f32 v{QA+1}, v{QA+1}, v{QA+3}")
    e(f"v_add_f32 v{QA+4}, v{QA+4}, v{QA+6}")
    e(f"v_add_f32 v{QA+5}, v{QA+5}, v{QA+7}")
    e(f"v_add_f32 v{QA}, v{QA}, v{QA+4}")
    e(f"v_add_f32 v{QA+1}, v{QA+1}, v{QA+5}")
    e(f"v_cvt_pk_bf16_f32 v{QA}, v{QA}, v{QA+1}")
    e(f"global_store_dword v6, v{QA}, s[24:25] {outflags}")
    e("s_branch L_h_exit")

    e.label("L_h_keeper")
    e.c("---- wg 56, wave 0: once every unit and helper is past its use of the epoch word, advance it")
    e(f"s_cmp_lg_u32 s2, {62 if womap else 56}")
    e("s_cbranch_scc1 L_h_exit")
    e("s_cmp_lg_u32 s3, 0")
    e("s_cbranch_scc1 L_h_exit")
    e("v_min_u32 v2, 23, v1")
    e("v_cmp_gt_u32 vcc, 8, v2")
    e("v_lshrrev_b32 v3, 1, v2")
    e("v_lshlrev_b32 v3, 7, v3")
    e("v_and_b32 v4, 1, v2")
    e("v_lshl_add_u32 v3, v4, 2, v3")
    e("v_subrev_u32 v4, 8, v2")
    e("v_lshrrev_b32 v5, 2, v4")
    e("v_add_u32 v5, 4, v5")
    e("v_lshlrev_b32 v5, 7, v5")
    e("v_and_b32 v4, 3, v4")
    e("v_lshl_add_u32 v4, v4, 2, v5")
    e("v_cndmask_b32 v3, v4, v3, vcc")
    e(f"v_add_u32 v3, {WS_REP}, v3")
    e("v_lshlrev_b32 v4, 3, v1")
    e(f"v_add_u32 v4, {WS_H}, v4")
    e(f"s_mov_b32 s56, {spin}")
    e.label("L_k_poll")
    e("global_load_dword v5, v3, s[28:29] sc1")
    e("global_load_dwordx2 v[6:7], v4, s[28:29] sc1")
    e("s_waitcnt vmcnt(0)")
    e("v_cmp_le_u32 vcc, 8, v5")
    e("v_cmp_eq_u32 s[54:55], s30, v6")
    e("v_cmp_eq_u32 s[68:69], s31, v7")
    e("s_nop 1")
    e("s_and_b64 s[54:55], s[54:55], vcc")
    e("s_and_b64 s[54:55], s[54:55], s[68:69]")
    e("s_cmp_eq_u64 s[54:55], -1")
    e("s_cbranch_scc1 L_k_done")
    e("s_sleep 8")
    e("s_sub_u32 s56, s56, 1")
    e("s_cmp_lg_u32 s56, 0")
    e("s_cbranch_scc1 L_k_poll")
    e.label("L_k_done")
    e("v_mov_b32 v2, 0")
    e("v_mov_b32 v6, s30")
    e("v_mov_b32 v7, s31")
    e("s_mov_b64 exec, 1")
    e(f"global_store_dwordx2 v2, v[6:7], s[28:29] offset:{WS_EPOCH} sc1")
    e("s_mov_b64 exec, -1")
    e.label("L_h_exit")
    dstamp(1, 0)
    dstamp(2, 30)
    dstamp(3, 17)
    stamp(5)
    stamp_flush()
    e.label("L_end")
    e("s_endpgm")
    e.l.append('.section .rodata,"a"')
    e.l.append(".p2align 6")
    e.l.append(f".amdhsa_kernel {KN}")
    e.l.append("  .amdhsa_next_free_vgpr 384")
    e.l.append("  .amdhsa_next_free_sgpr 96")
    e.l.append("  .amdhsa_accum_offset 256")
    e.l.append("  .amdhsa_group_segment_fixed_size 0")
    e.l.append("  .amdhsa_kernarg_size 104")
    e.l.append("  .amdhsa_user_sgpr_count 2")
    e.l.append("  .amdhsa_user_sgpr_kernarg_segment_ptr 1")
    e.l.append("  .amdhsa_system_sgpr_workgroup_id_x 1")
    e.l.append(".end_amdhsa_kernel")
    return "\n".join(e.l) + "\n"

if __name__ == "__main__":
    kw = dict(a.split("=") for a in sys.argv[2:])
    for k in kw:
        try: kw[k] = int(kw[k])
        except: kw[k] = kw[k].replace("+", " ")
    for k in list(kw):
        if kw[k] == "none": kw[k] = ""
    open(sys.argv[1], "w").write(gen(**kw))
```

```python
import sys
KN = "concat_heads__gqa_block_cached__mha_block_cached__decode_kernel"

HEADER = """; Fused decode attention (two problems: GQA 'A' and MHA 'B') for gfx950, one launch.
;   every wg, wave 0 : 32 columns of q = x @ wq for all 8 batches, published as 16-byte {4 x bf16, 64-bit epoch} granules
"""

class G:
    def __init__(self):
        self.l = []
    def __call__(self, s):
        self.l.append("  " + s)
    def label(self, s):
        self.l.append(s + ":")
    def c(self, s):
        self.l.append("  ; " + s)

def gen(stamps=0, spin=1 << 18, kflags="nt", vflags="nt", wqflags="nt", woflags="nt", sleep_q=1, sleep_o=4, mode="alt",
        prof=0, steptime=0, nact=4, prio=1, pace=0, qfirst=1, win=0, dbg=0, outflags="", split=0, nrep=1, qloop=1, earlyv=124, puball=0, womap=1):
    e = G()
    LDS_Q, LDS_TK, LDS_ST, LDS_QT, LDS_RED = 131072, 132096, 132128, 133120, 135168
    LDS_BYTES = 139264
    WS_EPOCH, WS_H, WS_REP, WS_QG, WS_O, WS_STAMP = 0, 0x1000, 0x2000, 0x10000, 0x60000, 0x20000000
    WS_PROG = 0x4000
    vPA, vPV = 244, 245
    NT = 128
    SCALE = 0x3DB8AA3B

    def stamp(idx):
        if not stamps: return
        e("s_memrealtime s[62:63]")
        e("s_waitcnt lgkmcnt(0)")
        e(f"v_writelane_b32 v254, s62, {idx}")
    def stamp_flush():
        if not stamps: return
        e("s_lshl_b32 s60, s2, 10")
        e("s_lshl_b32 s61, s3, 8")
        e("s_add_u32 s60, s60, s61")
        e(f"s_add_u32 s62, s28, {WS_STAMP}")
        e("s_addc_u32 s63, s29, 0")
        e("s_add_u32 s62, s62, s60")
        e("s_addc_u32 s63, s63, 0")
        e("v_mbcnt_lo_u32_b32 v253, -1, 0")
        e("v_mbcnt_hi_u32_b32 v253, -1, v253")
        e("v_lshlrev_b32 v253, 2, v253")
        e("global_store_dword v253, v254, s[62:63]")
    dcount = [0]
    def dstamp(word, wg, nwg=1):
        if not dbg: return
        dcount[0] += 1
        u = dcount[0]
        e("s_cmp_lg_u32 s3, 0")
        e(f"s_cbranch_scc1 L_ds_{u}")
        e(f"s_sub_u32 s61, s2, {wg}")
        e(f"s_cmp_ge_u32 s61, {nwg}")
        e(f"s_cbranch_scc1 L_ds_{u}")
        e("s_memrealtime s[62:63]")
        e(f"s_add_u32 s61, s61, {word}")
        e("s_lshl_b32 s61, s61, 2")
        e("s_waitcnt lgkmcnt(0)")
        e("v_mov_b32 v252, s62")
        e("v_mov_b32 v251, s61")
        e("s_mov_b64 exec, 1")
        e("global_store_dword v251, v252, s[26:27]")
        e("s_mov_b64 exec, -1")
        e.label(f"L_ds_{u}")
    def pf(k):
        if not prof: return
        e("s_memtime s[64:65]")
        e("s_waitcnt lgkmcnt(0)")
        e("s_sub_u32 s66, s64, s67")
        e(f"s_add_u32 s{84+k}, s{84+k}, s66")
        e("s_mov_b32 s67, s64")

    e.l.append(HEADER.rstrip("\n"))
    e.l.append(f"; @launch grid=(256,1,1) block=(256,1,1) lds={LDS_BYTES}")
    e.l.append('.amdgcn_target "amdgcn-amd-amdhsa--gfx950"')
    e.l.append(".text")
    e.l.append(f".globl {KN}")
    e.l.append(".p2align 8")
    e.l.append(f".type {KN},@function")
    e.label(KN)
    e("s_cmp_ge_u32 s2, 256")
    e("s_cbranch_scc1 L_end")
    e("s_load_dwordx16 s[4:19], s[0:1], 0")
    e("s_load_dwordx8 s[20:27], s[0:1], 64")
    e("s_load_dwordx2 s[28:29], s[0:1], 96")
    if stamps:
        e("v_mov_b32 v254, 0")
    e("v_lshrrev_b32 v2, 6, v0")
    e("v_and_b32 v1, 63, v0")
    e("v_readfirstlane_b32 s3, v2")
    stamp(0)
    e("s_waitcnt lgkmcnt(0)")
    dstamp(0, 0)
    dstamp(13, 255)
    e("s_cmp_eq_u32 s3, 0")
    e("s_cbranch_scc1 L_qslice")
    e("s_cmp_lt_u32 s2, 64")
    e("s_cbranch_scc1 L_h_join0")
    e("s_branch L_unit_setup")

    XF, BQ = 48, 112
    T0, T1, T2, T3 = 240, 241, 242, 243
    e.label("L_qslice")
    if prio: e("s_setprio 3")
    e("s_and_b32 s40, s2, 7")
    e("s_lshl_b32 s40, s40, 5")
    e("s_lshr_b32 s41, s2, 3")
    e("s_add_u32 s40, s40, s41")
    e("s_lshr_b32 s80, s40, 7")
    e("s_and_b32 s81, s40, 127")
    e("s_cmp_eq_u32 s80, 0")
    e("s_cselect_b32 s72, s4, s14")
    e("s_cselect_b32 s73, s5, s15")
    e("s_cselect_b32 s76, s10, s20")
    e("s_cselect_b32 s77, s11, s21")
    e("s_and_b32 s73, s73, 0xffff")
    e("s_and_b32 s77, s77, 0xffff")
    e("s_mov_b32 s74, 7168")
    e("s_mov_b32 s75, 0x20000")
    e("s_mov_b32 s78, 3670016")
    e("s_mov_b32 s79, 0x20000")
    e("v_lshrrev_b32 v2, 2, v1")
    e("v_lshlrev_b32 v2, 13, v2")
    e("v_and_b32 v3, 3, v1")
    e("v_lshl_add_u32 v2, v3, 4, v2")
    e("s_lshl_b32 s41, s81, 6")
    if qloop:
        e("s_mov_b32 m0, 0")
        e("s_mov_b32 s42, 28")
        e.label("L_qdma")
        e(f"buffer_load_dwordx4 v2, s[76:79], s41 offen {wqflags} lds")
        e("s_add_u32 s41, s41, 131072")
        e("s_add_u32 m0, m0, 1024")
        e("s_sub_u32 s42, s42, 1")
        e("s_cmp_lg_u32 s42, 0")
        e("s_cbranch_scc1 L_qdma")
    else:
        for n in range(28):
            e(f"s_add_u32 s42, s41, {n*131072}")
            e(f"s_mov_b32 m0, {n*1024}")
            e("s_nop 0")
            e(f"buffer_load_dwordx4 v2, s[76:79], s42 offen {wqflags} lds")
    e("v_and_b32 v4, 7, v1")
    e("v_mul_u32_u24 v4, 896, v4")
    e("v_lshrrev_b32 v5, 4, v1")
    e("v_lshl_add_u32 v4, v5, 4, v4")
    for ks in range(14):
        e(f"buffer_load_dwordx4 v[{XF+4*ks}:{XF+4*ks+3}], v4, s[72:75], 0 offen offset:{ks*64}")
    e("v_mov_b32 v6, 0")
    e(f"global_load_dwordx2 v[{T0}:{T1}], v6, s[28:29] offset:{WS_EPOCH} sc1")
    if qfirst: e("s_barrier")
    e("v_and_b32 v3, 15, v1")
    e("v_lshrrev_b32 v6, 2, v3")
    e("v_lshlrev_b32 v6, 6, v6")
    e("v_and_b32 v7, 3, v3")
    e("v_lshl_add_u32 v6, v7, 3, v6")
    e("v_lshl_add_u32 v6, v5, 9, v6")
    e("s_waitcnt vmcnt(0)")
    stamp(6)
    e(f"v_readfirstlane_b32 s30, v{T0}")
    e(f"v_readfirstlane_b32 s31, v{T1}")
    def trread(ks):
        for ct in range(2):
            r = BQ + (ks * 2 + ct) * 4
            e(f"ds_read_b64_tr_b16 v[{r}:{r+1}], v6 offset:{ks*2048 + ct*32}")
            e(f"ds_read_b64_tr_b16 v[{r+2}:{r+3}], v6 offset:{ks*2048 + ct*32 + 256}")
    def qmf(ks):
        for ct in range(2):
            r = BQ + (ks * 2 + ct) * 4
            d = 24 + 4 * ct
            c_ = "0" if ks == 0 else f"v[{d}:{d+3}]"
            e(f"v_mfma_f32_16x16x32_bf16 v[{d}:{d+3}], v[{XF+4*ks}:{XF+4*ks+3}], v[{r}:{r+3}], {c_}")
    for ks in range(3): trread(ks)
    e("s_add_u32 s30, s30, 1")
    e("s_addc_u32 s31, s31, 0")
    for ks in range(14):
        left = min(14, ks + 3) - (ks + 1)
        e(f"s_waitcnt lgkmcnt({4*left})")
        qmf(ks)
        if ks + 3 < 14: trread(ks + 3)
    e("v_lshlrev_b32 v6, 9, v5")
    e("v_lshl_add_u32 v6, v3, 2, v6")
    e(f"v_add_u32 v6, {LDS_QT}, v6")
    e("s_nop 7")
    e("s_mov_b32 exec_hi, 0")
    for ct in range(2):
        for r in range(4):
            e(f"ds_write_b32 v6, v{24+4*ct+r} offset:{r*128 + ct*64}")
    e("s_mov_b64 exec, -1")
    e("v_lshlrev_b32 v6, 4, v1")
    e(f"v_add_u32 v6, {LDS_QT}, v6")
    e("s_waitcnt lgkmcnt(0)")
    e("ds_read_b128 v[32:35], v6")
    e("v_lshrrev_b32 v6, 3, v1")
    e("v_lshlrev_b32 v6, 14, v6")
    e("v_and_b32 v7, 7, v1")
    e("v_lshl_add_u32 v6, v7, 4, v6")
    e("s_lshl_b32 s41, s80, 17")
    e("s_lshl_b32 s42, s81, 7")
    e("s_add_u32 s41, s41, s42")
    e(f"s_add_u32 s41, s41, {WS_QG}")
    e("s_add_u32 s82, s28, s41")
    e("s_addc_u32 s83, s29, 0")
    e("v_mov_b32 v38, s30")
    e("v_mov_b32 v39, s31")
    e("s_waitcnt lgkmcnt(0)")
    e("v_cvt_pk_bf16_f32 v36, v32, v33")
    e("v_cvt_pk_bf16_f32 v37, v34, v35")
    e("global_store_dwordx4 v6, v[36:39], s[82:83] sc1")
    stamp(7)
    e("s_cmp_lt_u32 s2, 64")
    e("s_cbranch_scc1 L_helper0")

    KV = 4
    VV = 12
    KA = 13
    vM, vL, vNMC, vTK, vONE, vTINC = 18, 19, 20, 21, 22, 17
    S0, PP, TT, ACC, VB = 24, 32, 36, 48, (112, 176)
    aK, aQ = 0, 64
    e.label("L_unit_setup")
    e("s_sub_u32 s40, s2, 64")
    e("s_cmp_lt_u32 s40, 64")
    e("s_cselect_b32 s52, 1, 0")
    e("s_cselect_b32 s32, s6, s16")
    e("s_cselect_b32 s33, s7, s17")
    e("s_cselect_b32 s36, s8, s18")
    e("s_cselect_b32 s37, s9, s19")
    e("s_cselect_b32 s41, 0, 64")
    e("s_sub_u32 s40, s40, s41")
    e("s_lshl_b32 s41, s40, 21")
    e("s_add_u32 s32, s32, s41")
    e("s_addc_u32 s33, s33, 0")
    e("s_add_u32 s36, s36, s41")
    e("s_addc_u32 s37, s37, 0")
    e("s_and_b32 s33, s33, 0xffff")
    e("s_and_b32 s37, s37, 0xffff")
    e("s_mov_b32 s34, 0x200000")
    e("s_mov_b32 s35, 0x20000")
    e("s_mov_b32 s38, 0x200000")
    e("s_mov_b32 s39, 0x20000")
    e("s_lshl_b32 s43, s3, 15")
    e("v_lshrrev_b32 v2, 5, v1")
    e("v_and_b32 v3, 31, v1")
    e("v_lshlrev_b32 v23, 2, v2")
    e("v_xor_b32 v3, v3, v23")
    e("v_lshlrev_b32 v3, 4, v3")
    e("v_lshl_add_u32 v3, v2, 9, v3")
    for n in range(8):
        cst = (8 * (n & 1) + ((n >> 1) & 3)) * 16
        e(f"v_xor_b32 v{KV+n}, {cst}, v3")
    e("v_lshrrev_b32 v2, 4, v1")
    e("v_and_b32 v3, 15, v1")
    e("v_lshlrev_b32 v23, 4, v3")
    e(f"v_lshl_add_u32 v{VV}, v2, 9, v23")

    def issueK(slot, soff, lo=0, hi=16):
        for n in range(lo, hi):
            if n % 4 == 0:
                e(f"s_add_u32 s42, {soff}, {(n//4)*4096}")
                e(f"s_add_u32 m0, s43, {slot*16384 + (n//4)*4096}")
                e("s_nop 0")
            e(f"buffer_load_dwordx4 v{KV + (n & 7)}, s[32:35], s42 offen offset:{(n%4)*1024} {kflags} lds")
    def issueV(slot, soff, lo=0, hi=8):
        for i in range(lo, hi):
            if i % 2 == 0:
                e(f"s_add_u32 s42, {soff}, {(i//2)*4096}")
            for j in range(2):
                r = VB[slot] + (i * 2 + j) * 4
                e(f"buffer_load_dwordx4 v[{r}:{r+3}], v{VV}, s[36:39], s42 offen offset:{(i%2)*2048 + j*256} {vflags}")
    def prefetch():
        e("s_lshl_b32 s40, s3, 14")
        e("s_add_u32 s47, s40, 0x10000")
        issueK(0, "s40")
        if pace: e("s_waitcnt vmcnt(8)")
        issueV(0, "s40")
        if pace: e("s_waitcnt vmcnt(8)")
        issueK(1, "s47")
        if pace: e("s_waitcnt vmcnt(8)")
        issueV(1, "s47")

    e("s_cmp_eq_u32 s3, 0")
    e("s_cbranch_scc1 L_u_rest")
    if qfirst: e("s_barrier")
    prefetch()
    stamp(1)
    e.label("L_u_rest")
    e("s_sub_u32 s40, s2, 64")
    e("s_cmp_lg_u32 s52, 0")
    e("s_cselect_b32 s41, 0, 64")
    e("s_sub_u32 s40, s40, s41")
    e("s_cmp_lg_u32 s52, 0")
    e("s_cselect_b32 s41, 3, 4")
    e("s_cselect_b32 s47, 7, 15")
    e("s_cselect_b32 s54, 11, 10")
    e("s_cselect_b32 s55, 0, 0x20000")
    e("s_cselect_b32 s68, 10, 9")
    e("s_cselect_b32 s69, 0, 0x10000")
    e("s_lshr_b32 s42, s40, s41")
    e("s_and_b32 s53, s40, s47")
    e("s_lshl_b32 s41, s53, s54")
    e("s_lshl_b32 s47, s42, 14")
    e("s_add_u32 s41, s41, s47")
    e("s_add_u32 s41, s41, s55")
    e(f"s_add_u32 s41, s41, {WS_QG}")
    e("s_add_u32 s48, s28, s41")
    e("s_addc_u32 s49, s29, 0")
    e("s_lshl_b32 s41, s53, s68")
    e("s_lshl_b32 s47, s42, 13")
    e("s_add_u32 s41, s41, s47")
    e("s_add_u32 s41, s41, s69")
    e(f"s_add_u32 s41, s41, {WS_O}")
    e("s_add_u32 s50, s28, s41")
    e("s_addc_u32 s51, s29, 0")
    e(f"s_mov_b32 s44, {SCALE}")
    e("s_mov_b32 s45, 0x05040100")
    e("s_mov_b32 s46, 0x07060302")
    e("v_and_b32 v23, 3, v3")
    e("v_lshlrev_b32 v23, 2, v23")
    e(f"v_lshrrev_b32 v{T2}, 2, v3")
    e(f"v_add_u32 v23, v23, v{T2}")
    e("v_lshlrev_b32 v23, 9, v23")
    e("v_add_u32 v23, s43, v23")
    for jj in range(4):
        e(f"v_add_u32 v{T2}, {4*jj}, v2")
        e(f"v_xor_b32 v{T2}, v{T2}, v3")
        e(f"v_lshl_add_u32 v{KA+jj}, v{T2}, 4, v23")
    e(f"v_mov_b32 v{vTK}, {LDS_TK}")
    e(f"v_mov_b32 v{vONE}, 1")
    e("v_cmp_eq_u32 vcc, 0, v1")
    e(f"v_mov_b32 v{vM}, 0xff800000")
    e(f"v_mov_b32 v{vL}, 0")
    e(f"v_cndmask_b32 v{vTINC}, 0, 1, vcc")
    e(f"v_mov_b32 v{vNMC}, 0")
    for i in range(64):
        e(f"v_mov_b32 v{ACC+i}, 0")
    e("s_cmp_lg_u32 s3, 0")
    e("s_cbranch_scc1 L_u_bar")
    e.c("---- wave 0: wait for this unit's q granules")
    e("v_lshlrev_b32 v2, 4, v1")
    e("s_cmp_lg_u32 s52, 0")
    e("s_cselect_b32 s41, 1024, 0")
    e("v_add_u32 v3, s41, v2")
    e(f"s_mov_b32 s56, {spin}")
    e.label("L_u_poll")
    e(f"global_load_dwordx4 v[24:27], v2, s[48:49] sc1")
    e(f"global_load_dwordx4 v[28:31], v3, s[48:49] sc1")
    e("s_waitcnt vmcnt(0)")
    e("v_cmp_eq_u32 vcc, s30, v26")
    e("v_cmp_eq_u32 s[54:55], s31, v27")
    e("v_cmp_eq_u32 s[68:69], s30, v30")
    e("v_cmp_eq_u32 s[70:71], s31, v31")
    e("s_nop 1")
    e("s_and_b64 s[54:55], s[54:55], vcc")
    e("s_and_b64 s[68:69], s[68:69], s[70:71]")
    e("s_and_b64 s[54:55], s[54:55], s[68:69]")
    e("s_cmp_eq_u64 s[54:55], -1")
    e("s_cbranch_scc1 L_u_qready")
    if sleep_q: e(f"s_sleep {sleep_q}")
    e("s_sub_u32 s56, s56, 1")
    e("s_cmp_lg_u32 s56, 0")
    e("s_cbranch_scc1 L_u_poll")
    e.label("L_u_qready")
    e("v_lshlrev_b32 v2, 3, v1")
    e(f"v_add_u32 v2, {LDS_Q}, v2")
    e("ds_write_b64 v2, v[24:25]")
    e("ds_write_b64 v2, v[28:29] offset:512")
    e("v_mov_b32 v2, 8")
    e("v_mov_b32 v3, s30")
    e(f"ds_write_b64 v{vTK}, v[2:3]")
    stamp(8)
    if prio: e("s_setprio 0")
    e("s_waitcnt lgkmcnt(0)")
    e("s_barrier")
    prefetch()
    stamp(1)
    e("s_branch L_u_go")
    e.label("L_u_bar")
    e("s_barrier")
    e.label("L_u_go")
    dstamp(12, 64)
    stamp(2)
    e("v_and_b32 v2, 1, v1")
    e("v_lshlrev_b32 v2, 9, v2")
    e("v_lshrrev_b32 v3, 4, v1")
    e("v_lshl_add_u32 v2, v3, 4, v2")
    e(f"v_add_u32 v2, {LDS_Q}, v2")
    for j in range(8):
        e(f"ds_read_b128 a[{aQ+4*j}:{aQ+4*j+3}], v2 offset:{j*64}")
    if win:
        e(f"ds_read_b32 v{vPV}, v{vTK} offset:4")
        e(f"s_add_u32 s92, s28, {WS_PROG}")
        e("s_addc_u32 s93, s29, 0")
        e("s_sub_u32 s94, s2, 64")
        e(f"v_and_b32 v{vPA}, 7, v1")
        e(f"v_lshlrev_b32 v{vPA}, 2, v{vPA}")
        e("s_lshl_b32 s41, s3, 7")
        e(f"v_add_u32 v{vPA}, s41, v{vPA}")
        e("s_waitcnt lgkmcnt(0)")
        e(f"v_readfirstlane_b32 s95, v{vPV}")
        e("s_nop 3")
        e("s_lshl_b32 s95, s95, 8")

    def prog_min():
        e(f"v_xor_b32 v{vPV}, s95, v{vPV}")
        e(f"v_cmp_gt_u32 vcc, 256, v{vPV}")
        e("s_nop 1")
        e(f"v_cndmask_b32 v{vPV}, 8, v{vPV}, vcc")
        e("s_nop 1")
        e(f"v_min_u32_dpp v{vPV}, v{vPV}, v{vPV} quad_perm:[1,0,3,2] row_mask:0xf bank_mask:0xf")
        e("s_nop 1")
        e(f"v_min_u32_dpp v{vPV}, v{vPV}, v{vPV} quad_perm:[2,3,0,1] row_mask:0xf bank_mask:0xf")
        e("s_nop 1")
        e(f"v_min_u32_dpp v{vPV}, v{vPV}, v{vPV} row_half_mirror row_mask:0xf bank_mask:0xf")
        e("s_nop 0")
        e(f"v_readfirstlane_b32 s68, v{vPV}")
        e("s_nop 3")
        e(f"s_add_u32 s68, s68, {win}")
    def prog_gate(u):
        e(f"s_cmp_ge_u32 s41, {NT - 8}")
        e(f"s_cbranch_scc1 L_go_{u}")
        prog_min()
        e("s_cmp_le_u32 s41, s68")
        e(f"s_cbranch_scc1 L_go_{u}")
        e(f"s_mov_b32 s56, {spin}")
        e.label(f"L_gate_{u}")
        e(f"global_load_dword v{vPV}, v{vPA}, s[92:93] sc1")
        e("s_waitcnt vmcnt(0)")
        prog_min()
        e("s_cmp_le_u32 s41, s68")
        e(f"s_cbranch_scc1 L_go_{u}")
        e("s_sleep 2")
        e("s_sub_u32 s56, s56, 1")
        e("s_cmp_lg_u32 s56, 0")
        e(f"s_cbranch_scc1 L_gate_{u}")
        e.label(f"L_go_{u}")
    def prog_publish(u):
        e("s_cmp_ge_u32 s94, 8")
        e(f"s_cbranch_scc1 L_nopub_{u}")
        if not puball:
            e("s_cmp_lg_u32 s3, 0")
            e(f"s_cbranch_scc1 L_nopub_{u}")
        e("s_min_u32 s68, s41, 255")
        e("s_or_b32 s68, s68, s95")
        e("s_lshl_b32 s54, s94, 2")
        e(f"v_lshlrev_b32 v{T2}, 7, v1")
        e(f"v_add_u32 v{T2}, s54, v{T2}")
        e(f"v_mov_b32 v{T3}, s68")
        e("s_mov_b64 exec, 15")
        e(f"global_store_dword v{T2}, v{T3}, s[92:93] sc1")
        e("s_mov_b64 exec, -1")
        e.label(f"L_nopub_{u}")

    uid = [0]
    def step(slot, kind):
        uid[0] += 1
        u = uid[0]
        steady = kind == "steady"
        if steady and steptime:
            e("s_memrealtime s[62:63]")
            e(f"s_lshr_b32 s68, s57, {1 if nact <= 2 else 0}")
            e("s_min_u32 s68, s68, 39")
            e("s_add_u32 s68, s68, 24")
            e("s_mov_b32 m0, s68")
            e("s_waitcnt lgkmcnt(0)")
            e("v_writelane_b32 v254, s62, m0")
            e("s_add_u32 s57, s57, 1")
        if steady: pf(6)
        if mode == "alt":
            wk = {'first0':48, 'first1':16, 'steady':0}[kind]
            wv = {'first0':32, 'first1':0, 'steady':0}[kind]
        else:
            wk = {'first0':48, 'first1':16, 'steady':16}[kind]
            wv = {'first0':32, 'first1':16, 'steady':16}[kind]
        tick = kind != "first0"
        if tick:
            if nact < 4 and kind == "first1":
                e(f"s_cmp_ge_u32 s3, {nact}")
                e(f"s_cbranch_scc1 L_notick_{u}")
            e(f"ds_add_rtn_u32 v{T3}, v{vTK}, v{vTINC}")
            if nact < 4 and kind == "first1":
                e.label(f"L_notick_{u}")
        if False:
            pass
        elif earlyv and steady and mode == "alt" and not split:
            e("s_cmp_eq_u32 s71, 0")
            e(f"s_cbranch_scc1 L_ev0_{u}")
            e("s_waitcnt vmcnt(16)")
            e(f"s_branch L_ev1_{u}")
            e.label(f"L_ev0_{u}")
            e("s_waitcnt vmcnt(0)")
            if win: e(f"global_load_dword v{vPV}, v{vPA}, s[92:93] sc1")
            issueV(slot, "s40")
            e.label(f"L_ev1_{u}")
        else:
            e(f"s_waitcnt vmcnt({wk})")
        if steady: pf(0)
        if mode == "alt" and steady and not (earlyv and not split):
            if split:
                if split in (1, 3):
                    issueK(slot, "s40", 8, 16)
                    e("s_waitcnt vmcnt(0)")
                if split in (1, 2): issueV(slot, "s40", 0, 4)
                else: issueV(slot, "s40")
            else:
                issueV(slot, "s40")
        if steady: pf(1)
        so = slot * 16384
        def rd(j):
            for t in range(2):
                r = aK + (j * 2 + t) * 4
                e(f"ds_read_b128 a[{r}:{r+3}], v{KA + (j & 3)} offset:{so + t*8192 + (j>>2)*256}")
        def mf(j):
            for t in range(2):
                r = aK + (j * 2 + t) * 4
                c_ = "0" if j == 0 else f"v[{S0+4*t}:{S0+4*t+3}]"
                e(f"v_mfma_f32_16x16x32_bf16 v[{S0+4*t}:{S0+4*t+3}], a[{r}:{r+3}], a[{aQ+4*j}:{aQ+4*j+3}], {c_}")
        for j in range(6): rd(j)
        e("s_waitcnt lgkmcnt(8)")
        mf(0); mf(1)
        rd(6); rd(7)
        e("s_waitcnt lgkmcnt(8)")
        mf(2); mf(3)
        e("s_waitcnt lgkmcnt(4)")
        mf(4); mf(5)
        e("s_waitcnt lgkmcnt(0)")
        mf(6); mf(7)
        if tick:
            e(f"v_readfirstlane_b32 s41, v{T3}")
            if nact < 4 and kind == "first1":
                e(f"s_cmp_ge_u32 s3, {nact}")
                e(f"s_cselect_b32 s41, {NT}, s41")

        if mode == "mid" and tick:
            e(f"s_cmp_ge_u32 s41, {NT}")
            e(f"s_cbranch_scc1 L_last_{u}")
            e("s_lshl_b32 s40, s41, 14")
            issueK(slot ^ 1, "s40")
        def softmax_pv(tag, wv_, after_v, after_pv):
            e("s_nop 7")
            e(f"v_max3_f32 v{T0}, v{S0}, v{S0+1}, v{S0+2}")
            e(f"v_max3_f32 v{T1}, v{S0+3}, v{S0+4}, v{S0+5}")
            e(f"v_max3_f32 v{T0}, v{S0+6}, v{S0+7}, v{T0}")
            e(f"v_max_f32 v{T0}, v{T0}, v{T1}")
            e(f"v_mov_b32 v{T1}, v{T0}")
            e("s_nop 1")
            e(f"v_permlane16_swap_b32 v{T1}, v{T0}")
            e(f"v_max_f32 v{T0}, v{T0}, v{T1}")
            e(f"v_mov_b32 v{T1}, v{T0}")
            e("s_nop 1")
            e(f"v_permlane32_swap_b32 v{T1}, v{T0}")
            e(f"v_max3_f32 v{T0}, v{T0}, v{T1}, v{vM}")
            e(f"v_cmp_gt_f32 vcc, v{T0}, v{vM}")
            e(f"s_cbranch_vccz L_norescale_{tag}")
            e(f"v_sub_f32 v{T1}, v{vM}, v{T0}")
            e(f"v_mul_f32 v{T1}, s44, v{T1}")
            e(f"v_exp_f32 v{T1}, v{T1}")
            e(f"v_mov_b32 v{vM}, v{T0}")
            e(f"v_mul_f32 v{vNMC}, s44, v{T0}")
            e(f"v_mul_f32 v{vL}, v{vL}, v{T1}")
            e(f"v_sub_f32 v{vNMC}, 0, v{vNMC}")
            for i in range(64):
                e(f"v_mul_f32 v{ACC+i}, v{ACC+i}, v{T1}")
            e.label(f"L_norescale_{tag}")
            for i in range(8):
                e(f"v_fma_f32 v{S0+i}, v{S0+i}, s44, v{vNMC}")
            for i in range(8):
                e(f"v_exp_f32 v{S0+i}, v{S0+i}")
            e("s_nop 0")
            e(f"v_add_f32 v{T0}, v{S0}, v{S0+1}")
            e(f"v_add_f32 v{T1}, v{S0+2}, v{S0+3}")
            e(f"v_add_f32 v{T2}, v{S0+4}, v{S0+5}")
            e(f"v_cvt_pk_bf16_f32 v{PP}, v{S0}, v{S0+1}")
            e(f"v_add_f32 v{T0}, v{T0}, v{T1}")
            e(f"v_add_f32 v{T1}, v{S0+6}, v{S0+7}")
            e(f"v_cvt_pk_bf16_f32 v{PP+1}, v{S0+2}, v{S0+3}")
            e(f"v_add_f32 v{T2}, v{T2}, v{T1}")
            e(f"v_cvt_pk_bf16_f32 v{PP+2}, v{S0+4}, v{S0+5}")
            e(f"v_add_f32 v{T0}, v{T0}, v{T2}")
            e(f"v_cvt_pk_bf16_f32 v{PP+3}, v{S0+6}, v{S0+7}")
            e(f"v_add_f32 v{vL}, v{vL}, v{T0}")
            if steady: pf(2)
            e(f"s_waitcnt vmcnt({wv_})")
            if steady and split in (1, 2) and mode == "alt":
                issueV(slot, "s40", 4, 8)
                e("s_waitcnt vmcnt(0)")
            if steady: pf(3)
            after_v()
            if steady: pf(4)
            vb = VB[slot]
            def perms(j, ee, tb):
                sel = "s45" if (ee & 1) == 0 else "s46"
                for ip in range(4):
                    lo = vb + ((2 * ip) * 2 + j) * 4 + (ee >> 1)
                    hi = vb + ((2 * ip + 1) * 2 + j) * 4 + (ee >> 1)
                    e(f"v_perm_b32 v{tb+ip}, v{hi}, v{lo}, {sel}")
            seq = [(j, ee) for j in range(2) for ee in range(8)]
            perms(*seq[0], TT)
            for idx, (j, ee) in enumerate(seq):
                tb = TT + 4 * (idx % 3)
                if idx + 1 < len(seq):
                    perms(*seq[idx + 1], TT + 4 * ((idx + 1) % 3))
                else:
                    e("s_nop 1")
                a = ACC + (j * 8 + ee) * 4
                e(f"v_mfma_f32_16x16x32_bf16 v[{a}:{a+3}], v[{tb}:{tb+3}], v[{PP}:{PP+3}], v[{a}:{a+3}]")
            after_pv()
            if steady: pf(5)
        if mode == "alt":
            def av():
                if kind != "first0":
                    if win: prog_publish(u)
                    e(f"s_cmp_ge_u32 s41, {NT}")
                    e(f"s_cbranch_scc1 L_nok_{u}")
                    if win and steady: prog_gate(u)
                    e("s_lshl_b32 s40, s41, 14")
                    if split in (1, 3): issueK(slot ^ 1, "s40", 0, 8)
                    else: issueK(slot ^ 1, "s40")
                    if earlyv and not split:
                        e(f"s_cmp_ge_u32 s41, {earlyv}")
                        e("s_cselect_b32 s71, 1, 0")
                        e(f"s_cbranch_scc0 L_nok_{u}")
                        issueV(slot ^ 1, "s40")
                    e.label(f"L_nok_{u}")
            softmax_pv(u, wv, av, lambda: None)
            if kind != "first0":
                e(f"s_cmp_ge_u32 s41, {NT}")
                e("s_cbranch_scc1 L_u_done")
        else:
            if kind == "first0":
                softmax_pv(u, wv, lambda: None, lambda: None)
            else:
                softmax_pv(u, wv, lambda: None, lambda: issueV(slot ^ 1, "s40"))
                e(f"s_branch L_next_{u}")
                e.label(f"L_last_{u}")
                softmax_pv(f"{u}b", 0, lambda: None, lambda: None)
                e("s_branch L_u_done")
                e.label(f"L_next_{u}")

    e("s_mov_b32 s71, 0")
    e("s_waitcnt lgkmcnt(0)")
    step(0, "first0")
    step(1, "first1")
    if prof:
        for k in range(8): e(f"s_mov_b32 s{84+k}, 0")
        e("s_memtime s[64:65]")
        e("s_waitcnt lgkmcnt(0)")
        e("s_mov_b32 s67, s64")
    if steptime: e("s_mov_b32 s57, 0")
    e.label("L_u_loop")
    step(0, "steady")
    step(1, "steady")
    e("s_branch L_u_loop")
    e.label("L_u_done")
    stamp(3)
    if prof:
        for k in range(7): e(f"v_writelane_b32 v254, s{84+k}, {16+k}")
    if steptime:
        e("v_writelane_b32 v254, s57, 23")
        e(f"s_mov_b32 s68, {1 if nact <= 2 else 0}")
        e("v_writelane_b32 v254, s68, 15")
    e.c("---- every wave leaves (m, l) and its unscaled accumulators in LDS")
    e("s_cmp_lg_u32 s3, 0")
    e("s_cbranch_scc1 L_u_noh")
    e(f"v_lshlrev_b32 v{vTINC}, 3, v1")
    e(f"s_add_u32 s58, s28, {WS_H}")
    e("s_addc_u32 s59, s29, 0")
    e(f"global_load_dwordx2 v[{T2}:{T3}], v{vTINC}, s[58:59] sc1")
    e.label("L_u_noh")
    e(f"v_mov_b32 v{T1}, v{vL}")
    e("s_nop 1")
    e(f"v_permlane16_swap_b32 v{T1}, v{vL}")
    e(f"v_add_f32 v{vL}, v{vL}, v{T1}")
    e(f"v_mov_b32 v{T1}, v{vL}")
    e("s_nop 1")
    e(f"v_permlane32_swap_b32 v{T1}, v{vL}")
    e(f"v_add_f32 v{vL}, v{vL}, v{T1}")
    e("v_and_b32 v2, 1, v1")
    e("v_lshlrev_b32 v3, 3, v2")
    e(f"v_add_u32 v3, {LDS_ST}, v3")
    e("s_lshl_b32 s41, s3, 4")
    e("v_add_u32 v3, s41, v3")
    e("v_lshlrev_b32 v2, 10, v2")
    e("v_lshrrev_b32 v23, 4, v1")
    e("v_lshl_add_u32 v2, v23, 7, v2")
    e("v_add_u32 v2, s43, v2")
    e("s_mov_b32 exec_lo, 0x00030003")
    e("s_mov_b32 exec_hi, 0x00030003")
    for j in range(2):
        for r in range(4):
            for ee in range(0, 8, 2):
                o0 = j * 128 + r * 8 + ee
                e(f"ds_write2_b32 v2, v{ACC + (j*8+ee)*4 + r}, v{ACC + (j*8+ee+1)*4 + r} offset0:{o0} offset1:{o0+1}")
    e("s_mov_b64 exec, 3")
    e(f"ds_write_b64 v3, v[{vM}:{vL}]")
    e("s_mov_b64 exec, -1")
    e("s_waitcnt lgkmcnt(0)")
    e("s_barrier")
    stamp(9)
    e("s_cmp_lg_u32 s3, 0")
    e("s_cbranch_scc1 L_u_exit")
    e("v_lshrrev_b32 v2, 5, v1")
    e("v_lshlrev_b32 v2, 3, v2")
    e(f"v_add_u32 v2, {LDS_ST}, v2")
    for w in range(4):
        e(f"ds_read_b64 v[{S0+2*w}:{S0+2*w+1}], v2 offset:{w*16}")
    e("v_lshlrev_b32 v2, 5, v1")
    e("v_add_u32 v3, 0x10000, v2")
    for w in range(4):
        vr = "v2" if w < 2 else "v3"
        e(f"ds_read_b128 v[{ACC+8*w}:{ACC+8*w+3}], {vr} offset:{(w&1)*32768}")
        e(f"ds_read_b128 v[{ACC+8*w+4}:{ACC+8*w+7}], {vr} offset:{(w&1)*32768+16}")
    e("s_waitcnt lgkmcnt(8)")
    e(f"v_max3_f32 v{T0}, v{S0}, v{S0+2}, v{S0+4}")
    e(f"v_max_f32 v{T0}, v{T0}, v{S0+6}")
    for w in range(4):
        e(f"v_sub_f32 v{S0+2*w}, v{S0+2*w}, v{T0}")
    for w in range(4):
        e(f"v_mul_f32 v{S0+2*w}, s44, v{S0+2*w}")
    for w in range(4):
        e(f"v_exp_f32 v{S0+2*w}, v{S0+2*w}")
    e("s_nop 0")
    e(f"v_mul_f32 v{T1}, v{S0}, v{S0+1}")
    e(f"v_fma_f32 v{T1}, v{S0+2}, v{S0+3}, v{T1}")
    e(f"v_fma_f32 v{T1}, v{S0+4}, v{S0+5}, v{T1}")
    e(f"v_fma_f32 v{T1}, v{S0+6}, v{S0+7}, v{T1}")
    e(f"v_rcp_f32 v{T1}, v{T1}")
    e("s_nop 0")
    for w in range(4):
        e(f"v_mul_f32 v{S0+2*w}, v{S0+2*w}, v{T1}")
    e("s_waitcnt lgkmcnt(0)")
    for i in range(8):
        e(f"v_mul_f32 v{ACC+i}, v{ACC+i}, v{S0}")
    for w in range(1, 4):
        for i in range(8):
            e(f"v_fma_f32 v{ACC+i}, v{ACC+8*w+i}, v{S0+2*w}, v{ACC+i}")
    for i in range(4):
        e(f"v_cvt_pk_bf16_f32 v{PP+i}, v{ACC+2*i}, v{ACC+2*i+1}")
    e("v_lshlrev_b32 v2, 4, v1")
    e("s_cmp_lg_u32 s52, 0")
    e("s_cbranch_scc1 L_u_storeA")
    e("s_mov_b32 exec_hi, 0")
    e.label("L_u_storeA")
    e(f"global_store_dwordx4 v2, v[{PP}:{PP+3}], s[50:51] sc1")
    e("s_mov_b64 exec, -1")
    e("s_cmp_lg_u32 s52, 0")
    e("s_cselect_b32 s41, 1, 2")
    e("s_cselect_b32 s47, 1, 3")
    e("s_cselect_b32 s54, 0, 4")
    e("s_lshr_b32 s41, s53, s41")
    e("s_add_u32 s41, s41, s54")
    e("s_lshl_b32 s41, s41, 7")
    e("s_and_b32 s47, s53, s47")
    e("s_lshl_b32 s47, s47, 2")
    e("s_add_u32 s41, s41, s47")
    e("v_lshlrev_b32 v2, 10, v1")
    e("v_add_u32 v2, s41, v2")
    e(f"s_mov_b32 s56, {spin}")
    e.label("L_u_hchk")
    e("s_waitcnt vmcnt(0)")
    e(f"v_cmp_eq_u32 vcc, s30, v{T2}")
    e(f"v_cmp_eq_u32 s[54:55], s31, v{T3}")
    e("s_nop 1")
    e("s_and_b64 s[54:55], s[54:55], vcc")
    e("s_cmp_eq_u64 s[54:55], -1")
    e("s_cbranch_scc1 L_u_sig")
    e(f"global_load_dwordx2 v[{T2}:{T3}], v{vTINC}, s[58:59] sc1")
    e("s_sub_u32 s56, s56, 1")
    e("s_cmp_lg_u32 s56, 0")
    e("s_cbranch_scc1 L_u_hchk")
    e.label("L_u_sig")
    stamp(10)
    e(f"s_add_u32 s58, s28, {WS_REP}")
    e("s_addc_u32 s59, s29, 0")
    e(f"s_mov_b64 exec, {(1 << nrep) - 1}")
    e(f"global_atomic_add v2, v{vONE}, s[58:59] sc1")
    e("s_mov_b64 exec, -1")
    e.label("L_u_exit")
    dstamp(4, 128, 8)
    stamp(4)
    stamp_flush()
    e("s_endpgm")

    WB, QA = 112, 48
    e.label("L_helper0")
    e.c("---- wave 0 of a helper: clear the replica line, then say so")
    e("s_lshl_b32 s47, s2, 7")
    e(f"s_add_u32 s47, s47, {WS_REP}")
    e("s_add_u32 s58, s28, s47")
    e("s_addc_u32 s59, s29, 0")
    e(f"s_cmp_ge_u32 s2, {8 * nrep}")
    e("s_cbranch_scc1 L_h_nozero")
    e("v_and_b32 v6, 31, v1")
    e("v_lshlrev_b32 v6, 2, v6")
    e("v_mov_b32 v7, 0")
    e("global_store_dword v6, v7, s[58:59] sc1")
    e.label("L_h_nozero")
    e("s_waitcnt vmcnt(0)")
    e("s_lshl_b32 s47, s2, 3")
    e(f"s_add_u32 s47, s47, {WS_H}")
    e("v_mov_b32 v6, s47")
    e("s_mov_b64 exec, 1")
    e("global_store_dwordx2 v6, v[38:39], s[28:29] sc1")
    e("s_mov_b64 exec, -1")
    e(f"v_mov_b32 v6, {LDS_RED + 2048}")
    e("ds_write_b64 v6, v[38:39]")
    e("s_waitcnt lgkmcnt(0)")
    if prio: e("s_setprio 0")
    stamp(2)
    e("s_branch L_h_join")
    e.label("L_h_join0")
    if qfirst: e("s_barrier")
    e.label("L_h_join")
    e("s_barrier")
    if womap:
        e("s_lshr_b32 s53, s2, 3")
        e("s_and_b32 s52, s2, 7")
        e("s_lshr_b32 s47, s53, 2")
        e("s_lshl_b32 s54, s52, 1")
        e("s_add_u32 s54, s54, s47")
        e("s_add_u32 s55, s52, 6")
        e("s_cmp_ge_u32 s52, 6")
        e("s_cselect_b32 s54, s55, s54")
        e("s_cselect_b32 s47, s47, 0")
        e("s_cmp_lg_u32 s47, 0")
        e("s_cbranch_scc1 L_h_keeper")
        e("s_cmp_ge_u32 s54, 7")
        e("s_cselect_b32 s40, 1, 0")
        e("s_cselect_b32 s47, 7, 0")
        e("s_sub_u32 s54, s54, s47")
        e("s_lshl_b32 s54, s54, 2")
        e("s_and_b32 s47, s53, 3")
        e("s_add_u32 s41, s54, s47")
    else:
        e("s_lshr_b32 s53, s2, 3")
        e("s_and_b32 s52, s2, 7")
        e("s_mul_i32 s52, s52, 7")
        e("s_add_u32 s52, s52, s53")
        e("s_cmp_eq_u32 s53, 7")
        e("s_cbranch_scc1 L_h_keeper")
        e("s_cmp_ge_u32 s52, 28")
        e("s_cselect_b32 s40, 1, 0")
        e("s_cselect_b32 s47, 28, 0")
        e("s_sub_u32 s41, s52, s47")
    e(f"s_and_b32 s47, s41, {nrep - 1}")
    e("s_lshl_b32 s47, s47, 3")
    e("s_lshl_b32 s58, s40, 2")
    e("s_add_u32 s47, s47, s58")
    e("s_add_u32 s47, s47, s3")
    e("s_lshl_b32 s47, s47, 7")
    e(f"s_add_u32 s47, s47, {WS_REP}")
    e("s_add_u32 s58, s28, s47")
    e("s_addc_u32 s59, s29, 0")
    e("s_cmp_eq_u32 s40, 0")
    e("s_cselect_b32 s36, s12, s22")
    e("s_cselect_b32 s37, s13, s23")
    e("s_and_b32 s37, s37, 0xffff")
    e("s_mov_b32 s38, 3670016")
    e("s_mov_b32 s39, 0x20000")
    e("v_lshrrev_b32 v2, 4, v1")
    e("v_and_b32 v3, 15, v1")
    e("v_lshrrev_b32 v6, 1, v1")
    e("v_mul_u32_u24 v6, 896, v6")
    e("v_and_b32 v7, 1, v1")
    e("v_lshl_add_u32 v6, v7, 4, v6")
    e("s_mul_i32 s42, s3, 917504")
    e("s_lshl_b32 s47, s41, 5")
    e("s_add_u32 s42, s42, s47")
    e("s_lshl_b32 s43, s3, 15")
    for n in range(32):
        e(f"s_add_u32 s47, s42, {n*32*896}")
        e(f"s_add_u32 m0, s43, {n*1024}")
        e("s_nop 0")
        e(f"buffer_load_dwordx4 v6, s[36:39], s47 offen {woflags} lds")
    e("v_lshrrev_b32 v7, 2, v3")
    e("v_lshlrev_b32 v7, 5, v7")
    e("v_and_b32 v8, 3, v3")
    e("v_lshl_add_u32 v7, v8, 3, v7")
    e("v_lshl_add_u32 v7, v2, 8, v7")
    e("v_add_u32 v7, s43, v7")
    e("s_waitcnt vmcnt(0)")
    stamp(3)
    for ks in range(32):
        e(f"ds_read_b64_tr_b16 a[{4*ks}:{4*ks+1}], v7 offset:{ks*1024}")
        e(f"ds_read_b64_tr_b16 a[{4*ks+2}:{4*ks+3}], v7 offset:{ks*1024+128}")
        if ks % 4 == 3:
            e("s_waitcnt lgkmcnt(0)")
    e("v_and_b32 v9, 3, v1")
    e("v_lshlrev_b32 v9, 2, v9")
    e("s_lshl_b32 s47, s40, 16")
    e(f"s_add_u32 s47, s47, {WS_O}")
    e("s_add_u32 s48, s28, s47")
    e("s_addc_u32 s49, s29, 0")
    e("v_and_b32 v10, 7, v1")
    e("v_lshlrev_b32 v10, 13, v10")
    e("v_lshl_add_u32 v10, v2, 4, v10")
    e("s_lshl_b32 s47, s3, 11")
    e("v_add_u32 v10, s47, v10")
    for hh in range(4):
        e("s_cmp_eq_u32 s40, 0")
        e(f"s_cselect_b32 s{72+hh}, {hh >> 1}, {hh}")
    e(f"v_mov_b32 v12, {LDS_RED + 2048}")
    e("ds_read_b64 v[14:15], v12")
    e("s_sub_u32 s47, s58, s28")
    e(f"s_sub_u32 s47, s47, {WS_REP}")
    e("s_lshr_b32 s47, s47, 4")
    e(f"s_add_u32 s47, s47, {WS_H}")
    e("v_mov_b32 v12, s47")
    e(f"s_mov_b32 s56, {spin}")
    e.label("L_h_hw")
    e("global_load_dwordx2 v[16:17], v12, s[28:29] sc1")
    e("s_waitcnt vmcnt(0) lgkmcnt(0)")
    e("v_cmp_eq_u32 vcc, v14, v16")
    e("v_cmp_eq_u32 s[54:55], v15, v17")
    e("s_nop 1")
    e("s_and_b64 s[54:55], s[54:55], vcc")
    e("s_cmp_eq_u64 s[54:55], -1")
    e("s_cbranch_scc1 L_h_hok")
    e("s_sleep 4")
    e("s_sub_u32 s56, s56, 1")
    e("s_cmp_lg_u32 s56, 0")
    e("s_cbranch_scc1 L_h_hw")
    e.label("L_h_hok")
    e("s_mov_b32 s57, 15")
    e(f"s_mov_b32 s56, {spin}")
    e.label("L_h_poll")
    e("global_load_dword v11, v9, s[58:59] sc1")
    e("s_waitcnt vmcnt(0)")
    for hh in range(4):
        e(f"s_bitcmp1_b32 s57, {hh}")
        e(f"s_cbranch_scc0 L_h_skip{hh}")
        e(f"v_readlane_b32 s68, v11, s{72+hh}")
        e("s_nop 3")
        e("s_cmp_lt_u32 s68, 8")
        e(f"s_cbranch_scc1 L_h_skip{hh}")
        e(f"s_bitset0_b32 s57, {hh}")
        e("s_mov_b32 exec_lo, 0x00ff00ff")
        e("s_mov_b32 exec_hi, 0x00ff00ff")
        for ks in range(8 * hh, 8 * hh + 8):
            r = WB + 4 * ks
            e(f"global_load_dwordx4 v[{r}:{r+3}], v10, s[48:49] offset:{ks*64} sc1")
        e("s_mov_b64 exec, -1")
        e.label(f"L_h_skip{hh}")
    e("s_cmp_eq_u32 s57, 0")
    e("s_cbranch_scc1 L_h_ready")
    if sleep_o: e(f"s_sleep {sleep_o}")
    e("s_sub_u32 s56, s56, 1")
    e("s_cmp_lg_u32 s56, 0")
    e("s_cbranch_scc1 L_h_poll")
    e.label("L_h_ready")
    stamp(4)
    e("s_waitcnt vmcnt(0)")
    stamp(11)
    for ks in range(32):
        r = WB + 4 * ks
        a = QA + 4 * (ks % 4)
        c_ = "0" if ks < 4 else f"v[{a}:{a+3}]"
        e(f"v_mfma_f32_16x16x32_bf16 v[{a}:{a+3}], v[{r}:{r+3}], a[{4*ks}:{4*ks+3}], {c_}")
    e("v_lshlrev_b32 v6, 8, v2")
    e("v_lshl_add_u32 v6, v3, 2, v6")
    e("s_lshl_b32 s47, s3, 9")
    e(f"s_add_u32 s47, s47, {LDS_RED}")
    e("v_add_u32 v6, s47, v6")
    e("s_nop 7")
    for i in range(4):
        e(f"v_add_f32 v{QA+i}, v{QA+i}, v{QA+4+i}")
        e(f"v_add_f32 v{QA+8+i}, v{QA+8+i}, v{QA+12+i}")
    for i in range(4):
        e(f"v_add_f32 v{QA+i}, v{QA+i}, v{QA+8+i}")
    e("s_mov_b32 exec_hi, 0")
    for r in range(4):
        e(f"ds_write_b32 v6, v{QA+r} offset:{r*64}")
    e("s_mov_b64 exec, -1")
    e("s_waitcnt lgkmcnt(0)")
    e("s_barrier")
    e("s_cmp_lg_u32 s3, 0")
    e("s_cbranch_scc1 L_h_exit")
    e("v_lshlrev_b32 v6, 3, v1")
    e(f"v_add_u32 v6, {LDS_RED}, v6")
    for w in range(4):
        e(f"ds_read_b64 v[{QA+2*w}:{QA+2*w+1}], v6 offset:{w*512}")
    e("v_lshrrev_b32 v6, 3, v1")
    e("v_mul_u32_u24 v6, 1792, v6")
    e("v_and_b32 v7, 7, v1")
    e("v_lshl_add_u32 v6, v7, 2, v6")
    e("s_mul_i32 s47, s40, 896")
    e("s_lshl_b32 s48, s41, 5")
    e("s_add_u32 s47, s47, s48")
    e("v_add_u32 v6, s47, v6")
    e("s_waitcnt lgkmcnt(0)")
    e(f"v_add_f32 v{QA}, v{QA}, v{QA+2}")
    e(f"v_add_f32 v{QA+1}, v{QA+1}, v{QA+3}")
    e(f"v_add_f32 v{QA+4}, v{QA+4}, v{QA+6}")
    e(f"v_add_f32 v{QA+5}, v{QA+5}, v{QA+7}")
    e(f"v_add_f32 v{QA}, v{QA}, v{QA+4}")
    e(f"v_add_f32 v{QA+1}, v{QA+1}, v{QA+5}")
    e(f"v_cvt_pk_bf16_f32 v{QA}, v{QA}, v{QA+1}")
    e(f"global_store_dword v6, v{QA}, s[24:25] {outflags}")
    e("s_branch L_h_exit")

    e.label("L_h_keeper")
    e.c("---- wg 56, wave 0: once every unit and helper is past its use of the epoch word, advance it")
    e(f"s_cmp_lg_u32 s2, {62 if womap else 56}")
    e("s_cbranch_scc1 L_h_exit")
    e("s_cmp_lg_u32 s3, 0")
    e("s_cbranch_scc1 L_h_exit")
    e("v_min_u32 v2, 23, v1")
    e("v_cmp_gt_u32 vcc, 8, v2")
    e("v_lshrrev_b32 v3, 1, v2")
    e("v_lshlrev_b32 v3, 7, v3")
    e("v_and_b32 v4, 1, v2")
    e("v_lshl_add_u32 v3, v4, 2, v3")
    e("v_subrev_u32 v4, 8, v2")
    e("v_lshrrev_b32 v5, 2, v4")
    e("v_add_u32 v5, 4, v5")
    e("v_lshlrev_b32 v5, 7, v5")
    e("v_and_b32 v4, 3, v4")
    e("v_lshl_add_u32 v4, v4, 2, v5")
    e("v_cndmask_b32 v3, v4, v3, vcc")
    e(f"v_add_u32 v3, {WS_REP}, v3")
    e("v_lshlrev_b32 v4, 3, v1")
    e(f"v_add_u32 v4, {WS_H}, v4")
    e(f"s_mov_b32 s56, {spin}")
    e.label("L_k_h")
    e("global_load_dwordx2 v[6:7], v4, s[28:29] sc1")
    e("s_waitcnt vmcnt(0)")
    e("v_cmp_eq_u32 s[54:55], s30, v6")
    e("v_cmp_eq_u32 s[68:69], s31, v7")
    e("s_nop 1")
    e("s_and_b64 s[54:55], s[54:55], s[68:69]")
    e("s_cmp_eq_u64 s[54:55], -1")
    e("s_cbranch_scc1 L_k_h2")
    e("s_sleep 8")
    e("s_sub_u32 s56, s56, 1")
    e("s_cmp_lg_u32 s56, 0")
    e("s_cbranch_scc1 L_k_h")
    e.label("L_k_h2")
    e(f"s_mov_b32 s56, {spin}")
    e.label("L_k_poll")
    e("global_load_dword v5, v3, s[28:29] sc1")
    e("s_waitcnt vmcnt(0)")
    e("v_cmp_gt_u32 vcc, 8, v5")
    e("s_cbranch_vccz L_k_done")
    e("s_sleep 8")
    e("s_sub_u32 s56, s56, 1")
    e("s_cmp_lg_u32 s56, 0")
    e("s_cbranch_scc1 L_k_poll")
    e.label("L_k_done")
    e("v_mov_b32 v2, 0")
    e("v_mov_b32 v6, s30")
    e("v_mov_b32 v7, s31")
    e("s_mov_b64 exec, 1")
    e(f"global_store_dwordx2 v2, v[6:7], s[28:29] offset:{WS_EPOCH} sc1")
    e("s_mov_b64 exec, -1")
    e.label("L_h_exit")
    dstamp(1, 0)
    dstamp(2, 30)
    dstamp(3, 17)
    stamp(5)
    stamp_flush()
    e.label("L_end")
    e("s_endpgm")
    e.l.append('.section .rodata,"a"')
    e.l.append(".p2align 6")
    e.l.append(f".amdhsa_kernel {KN}")
    e.l.append("  .amdhsa_next_free_vgpr 384")
    e.l.append("  .amdhsa_next_free_sgpr 96")
    e.l.append("  .amdhsa_accum_offset 256")
    e.l.append("  .amdhsa_group_segment_fixed_size 0")
    e.l.append("  .amdhsa_kernarg_size 104")
    e.l.append("  .amdhsa_user_sgpr_count 2")
    e.l.append("  .amdhsa_user_sgpr_kernarg_segment_ptr 1")
    e.l.append("  .amdhsa_system_sgpr_workgroup_id_x 1")
    e.l.append(".end_amdhsa_kernel")
    return "\n".join(e.l) + "\n"

if __name__ == "__main__":
    kw = dict(a.split("=") for a in sys.argv[2:])
    for k in kw:
        try: kw[k] = int(kw[k])
        except: kw[k] = kw[k].replace("+", " ")
    for k in list(kw):
        if kw[k] == "none": kw[k] = ""
    open(sys.argv[1], "w").write(gen(**kw))
```

```python
import sys
KN = "concat_heads__gqa_block_cached__mha_block_cached__decode_kernel"

HEADER = """; Fused decode attention (two problems: GQA 'A' and MHA 'B') for gfx950, one launch.
;   every wg, wave 0 : 32 columns of q = x @ wq for all 8 batches, published as 16-byte {4 x bf16, 64-bit epoch} granules
"""

class G:
    def __init__(self):
        self.l = []
    def __call__(self, s):
        self.l.append("  " + s)
    def label(self, s):
        self.l.append(s + ":")
    def c(self, s):
        self.l.append("  ; " + s)

def gen(stamps=0, spin=1 << 18, kflags="nt", vflags="nt", wqflags="nt", woflags="nt", sleep_q=1, sleep_o=4, mode="alt",
        prof=0, steptime=0, nact=4, prio=1, pace=0, qfirst=1, win=0, dbg=0, outflags="", split=0, nrep=1, qloop=1, earlyv=124, puball=0, womap=1, umap="lin", codepf=0, wolate=1, woearly=20):
    e = G()
    LDS_Q, LDS_TK, LDS_ST, LDS_QT, LDS_RED = 131072, 132096, 132128, 133120, 135168
    LDS_BYTES = 139264
    WS_EPOCH, WS_H, WS_REP, WS_QG, WS_O, WS_STAMP = 0, 0x1000, 0x2000, 0x10000, 0x60000, 0x20000000
    WS_PROG = 0x4000
    vPA, vPV = 244, 245
    NT = 128
    SCALE = 0x3DB8AA3B

    def stamp(idx):
        if not stamps: return
        e("s_memrealtime s[62:63]")
        e("s_waitcnt lgkmcnt(0)")
        e(f"v_writelane_b32 v254, s62, {idx}")
    def stamp_flush():
        if not stamps: return
        e("s_lshl_b32 s60, s2, 10")
        e("s_lshl_b32 s61, s3, 8")
        e("s_add_u32 s60, s60, s61")
        e(f"s_add_u32 s62, s28, {WS_STAMP}")
        e("s_addc_u32 s63, s29, 0")
        e("s_add_u32 s62, s62, s60")
        e("s_addc_u32 s63, s63, 0")
        e("v_mbcnt_lo_u32_b32 v253, -1, 0")
        e("v_mbcnt_hi_u32_b32 v253, -1, v253")
        e("v_lshlrev_b32 v253, 2, v253")
        e("global_store_dword v253, v254, s[62:63]")
    dcount = [0]
    def dstamp(word, wg, nwg=1):
        if not dbg: return
        dcount[0] += 1
        u = dcount[0]
        e("s_cmp_lg_u32 s3, 0")
        e(f"s_cbranch_scc1 L_ds_{u}")
        e(f"s_sub_u32 s61, s2, {wg}")
        e(f"s_cmp_ge_u32 s61, {nwg}")
        e(f"s_cbranch_scc1 L_ds_{u}")
        e("s_memrealtime s[62:63]")
        e(f"s_add_u32 s61, s61, {word}")
        e("s_lshl_b32 s61, s61, 2")
        e("s_waitcnt lgkmcnt(0)")
        e("v_mov_b32 v252, s62")
        e("v_mov_b32 v251, s61")
        e("s_mov_b64 exec, 1")
        e("global_store_dword v251, v252, s[26:27]")
        e("s_mov_b64 exec, -1")
        e.label(f"L_ds_{u}")
    def pf(k):
        if not prof: return
        e("s_memtime s[64:65]")
        e("s_waitcnt lgkmcnt(0)")
        e("s_sub_u32 s66, s64, s67")
        e(f"s_add_u32 s{84+k}, s{84+k}, s66")
        e("s_mov_b32 s67, s64")

    e.l.append(HEADER.rstrip("\n"))
    e.l.append(f"; @launch grid=(256,1,1) block=(256,1,1) lds={LDS_BYTES}")
    e.l.append('.amdgcn_target "amdgcn-amd-amdhsa--gfx950"')
    e.l.append(".text")
    e.l.append(f".globl {KN}")
    e.l.append(".p2align 8")
    e.l.append(f".type {KN},@function")
    e.label(KN)
    e("s_cmp_ge_u32 s2, 256")
    e("s_cbranch_scc1 L_end")
    e("s_load_dwordx16 s[4:19], s[0:1], 0")
    e("s_load_dwordx8 s[20:27], s[0:1], 64")
    e("s_load_dwordx2 s[28:29], s[0:1], 96")
    if stamps:
        e("v_mov_b32 v254, 0")
    e("v_lshrrev_b32 v2, 6, v0")
    e("v_and_b32 v1, 63, v0")
    e("v_readfirstlane_b32 s3, v2")
    stamp(0)
    e("s_waitcnt lgkmcnt(0)")
    dstamp(0, 0)
    dstamp(13, 255)
    e("s_cmp_eq_u32 s3, 0")
    e("s_cbranch_scc1 L_qslice")
    e("s_cmp_lt_u32 s2, 64")
    e("s_cbranch_scc1 L_h_join0")
    e("s_branch L_unit_setup")

    XF, BQ = 48, 112
    T0, T1, T2, T3 = 240, 241, 242, 243
    e.label("L_qslice")
    if prio: e("s_setprio 3")
    e("s_and_b32 s40, s2, 7")
    e("s_lshl_b32 s40, s40, 5")
    e("s_lshr_b32 s41, s2, 3")
    e("s_add_u32 s40, s40, s41")
    e("s_lshr_b32 s80, s40, 7")
    e("s_and_b32 s81, s40, 127")
    e("s_cmp_eq_u32 s80, 0")
    e("s_cselect_b32 s72, s4, s14")
    e("s_cselect_b32 s73, s5, s15")
    e("s_cselect_b32 s76, s10, s20")
    e("s_cselect_b32 s77, s11, s21")
    e("s_and_b32 s73, s73, 0xffff")
    e("s_and_b32 s77, s77, 0xffff")
    e("s_mov_b32 s74, 7168")
    e("s_mov_b32 s75, 0x20000")
    e("s_mov_b32 s78, 3670016")
    e("s_mov_b32 s79, 0x20000")
    e("v_lshrrev_b32 v2, 2, v1")
    e("v_lshlrev_b32 v2, 13, v2")
    e("v_and_b32 v3, 3, v1")
    e("v_lshl_add_u32 v2, v3, 4, v2")
    e("s_lshl_b32 s41, s81, 6")
    if qloop:
        e("s_mov_b32 m0, 0")
        e("s_mov_b32 s42, 28")
        e.label("L_qdma")
        e(f"buffer_load_dwordx4 v2, s[76:79], s41 offen {wqflags} lds")
        e("s_add_u32 s41, s41, 131072")
        e("s_add_u32 m0, m0, 1024")
        e("s_sub_u32 s42, s42, 1")
        e("s_cmp_lg_u32 s42, 0")
        e("s_cbranch_scc1 L_qdma")
    else:
        for n in range(28):
            e(f"s_add_u32 s42, s41, {n*131072}")
            e(f"s_mov_b32 m0, {n*1024}")
            e("s_nop 0")
            e(f"buffer_load_dwordx4 v2, s[76:79], s42 offen {wqflags} lds")
    e("v_and_b32 v4, 7, v1")
    e("v_mul_u32_u24 v4, 896, v4")
    e("v_lshrrev_b32 v5, 4, v1")
    e("v_lshl_add_u32 v4, v5, 4, v4")
    for ks in range(14):
        e(f"buffer_load_dwordx4 v[{XF+4*ks}:{XF+4*ks+3}], v4, s[72:75], 0 offen offset:{ks*64}")
    e("v_mov_b32 v6, 0")
    e(f"global_load_dwordx2 v[{T0}:{T1}], v6, s[28:29] offset:{WS_EPOCH} sc1")
    if qfirst: e("s_barrier")
    e("v_and_b32 v3, 15, v1")
    e("v_lshrrev_b32 v6, 2, v3")
    e("v_lshlrev_b32 v6, 6, v6")
    e("v_and_b32 v7, 3, v3")
    e("v_lshl_add_u32 v6, v7, 3, v6")
    e("v_lshl_add_u32 v6, v5, 9, v6")
    e("s_waitcnt vmcnt(0)")
    stamp(6)
    e(f"v_readfirstlane_b32 s30, v{T0}")
    e(f"v_readfirstlane_b32 s31, v{T1}")
    def trread(ks):
        for ct in range(2):
            r = BQ + (ks * 2 + ct) * 4
            e(f"ds_read_b64_tr_b16 v[{r}:{r+1}], v6 offset:{ks*2048 + ct*32}")
            e(f"ds_read_b64_tr_b16 v[{r+2}:{r+3}], v6 offset:{ks*2048 + ct*32 + 256}")
    def qmf(ks):
        for ct in range(2):
            r = BQ + (ks * 2 + ct) * 4
            d = 24 + 4 * ct
            c_ = "0" if ks == 0 else f"v[{d}:{d+3}]"
            e(f"v_mfma_f32_16x16x32_bf16 v[{d}:{d+3}], v[{XF+4*ks}:{XF+4*ks+3}], v[{r}:{r+3}], {c_}")
    for ks in range(3): trread(ks)
    e("s_add_u32 s30, s30, 1")
    e("s_addc_u32 s31, s31, 0")
    for ks in range(14):
        left = min(14, ks + 3) - (ks + 1)
        e(f"s_waitcnt lgkmcnt({4*left})")
        qmf(ks)
        if ks + 3 < 14: trread(ks + 3)
    e("v_lshlrev_b32 v6, 9, v5")
    e("v_lshl_add_u32 v6, v3, 2, v6")
    e(f"v_add_u32 v6, {LDS_QT}, v6")
    e("s_nop 7")
    e("s_mov_b32 exec_hi, 0")
    for ct in range(2):
        for r in range(4):
            e(f"ds_write_b32 v6, v{24+4*ct+r} offset:{r*128 + ct*64}")
    e("s_mov_b64 exec, -1")
    e("v_lshlrev_b32 v6, 4, v1")
    e(f"v_add_u32 v6, {LDS_QT}, v6")
    e("s_waitcnt lgkmcnt(0)")
    e("ds_read_b128 v[32:35], v6")
    e("v_lshrrev_b32 v6, 3, v1")
    e("v_lshlrev_b32 v6, 14, v6")
    e("v_and_b32 v7, 7, v1")
    e("v_lshl_add_u32 v6, v7, 4, v6")
    e("s_lshl_b32 s41, s80, 17")
    e("s_lshl_b32 s42, s81, 7")
    e("s_add_u32 s41, s41, s42")
    e(f"s_add_u32 s41, s41, {WS_QG}")
    e("s_add_u32 s82, s28, s41")
    e("s_addc_u32 s83, s29, 0")
    e("v_mov_b32 v38, s30")
    e("v_mov_b32 v39, s31")
    e("s_waitcnt lgkmcnt(0)")
    e("v_cvt_pk_bf16_f32 v36, v32, v33")
    e("v_cvt_pk_bf16_f32 v37, v34, v35")
    e("global_store_dwordx4 v6, v[36:39], s[82:83] sc1")
    stamp(7)
    e("s_cmp_lt_u32 s2, 64")
    e("s_cbranch_scc1 L_helper0")

    KV = 4
    VV = 12
    KA = 13
    vM, vL, vNMC, vTK, vONE, vTINC = 18, 19, 20, 21, 22, 17
    S0, PP, TT, ACC, VB = 24, 32, 36, 48, (112, 176)
    aK, aQ = 0, 64
    def unit_index():
        e("s_sub_u32 s40, s2, 64")
        if umap == "xcd":
            e("s_and_b32 s41, s40, 7")
            e("s_mul_i32 s41, s41, 24")
            e("s_lshr_b32 s40, s40, 3")
            e("s_add_u32 s40, s40, s41")
        elif umap == "swz":
            e("s_lshr_b32 s41, s40, 3")
            e("s_and_b32 s41, s41, 7")
            e("s_xor_b32 s40, s40, s41")
        elif umap == "mix":
            e("s_mul_i32 s40, s40, 37")
            e("s_mul_hi_u32 s41, s40, 0x1555556")
            e("s_mul_i32 s41, s41, 192")
            e("s_sub_u32 s40, s40, s41")
    e.label("L_unit_setup")
    unit_index()
    e("s_cmp_lt_u32 s40, 64")
    e("s_cselect_b32 s52, 1, 0")
    e("s_cselect_b32 s32, s6, s16")
    e("s_cselect_b32 s33, s7, s17")
    e("s_cselect_b32 s36, s8, s18")
    e("s_cselect_b32 s37, s9, s19")
    e("s_cselect_b32 s41, 0, 64")
    e("s_sub_u32 s40, s40, s41")
    e("s_lshl_b32 s41, s40, 21")
    e("s_add_u32 s32, s32, s41")
    e("s_addc_u32 s33, s33, 0")
    e("s_add_u32 s36, s36, s41")
    e("s_addc_u32 s37, s37, 0")
    e("s_and_b32 s33, s33, 0xffff")
    e("s_and_b32 s37, s37, 0xffff")
    e("s_mov_b32 s34, 0x200000")
    e("s_mov_b32 s35, 0x20000")
    e("s_mov_b32 s38, 0x200000")
    e("s_mov_b32 s39, 0x20000")
    e("s_lshl_b32 s43, s3, 15")
    e("v_lshrrev_b32 v2, 5, v1")
    e("v_and_b32 v3, 31, v1")
    e("v_lshlrev_b32 v23, 2, v2")
    e("v_xor_b32 v3, v3, v23")
    e("v_lshlrev_b32 v3, 4, v3")
    e("v_lshl_add_u32 v3, v2, 9, v3")
    for n in range(8):
        cst = (8 * (n & 1) + ((n >> 1) & 3)) * 16
        e(f"v_xor_b32 v{KV+n}, {cst}, v3")
    e("v_lshrrev_b32 v2, 4, v1")
    e("v_and_b32 v3, 15, v1")
    e("v_lshlrev_b32 v23, 4, v3")
    e(f"v_lshl_add_u32 v{VV}, v2, 9, v23")

    def issueK(slot, soff, lo=0, hi=16):
        for n in range(lo, hi):
            if n % 4 == 0:
                e(f"s_add_u32 s42, {soff}, {(n//4)*4096}")
                e(f"s_add_u32 m0, s43, {slot*16384 + (n//4)*4096}")
                e("s_nop 0")
            e(f"buffer_load_dwordx4 v{KV + (n & 7)}, s[32:35], s42 offen offset:{(n%4)*1024} {kflags} lds")
    def issueV(slot, soff, lo=0, hi=8):
        for i in range(lo, hi):
            if i % 2 == 0:
                e(f"s_add_u32 s42, {soff}, {(i//2)*4096}")
            for j in range(2):
                r = VB[slot] + (i * 2 + j) * 4
                e(f"buffer_load_dwordx4 v[{r}:{r+3}], v{VV}, s[36:39], s42 offen offset:{(i%2)*2048 + j*256} {vflags}")
    def prefetch():
        e("s_lshl_b32 s40, s3, 14")
        e("s_add_u32 s47, s40, 0x10000")
        issueK(0, "s40")
        if pace: e("s_waitcnt vmcnt(8)")
        issueV(0, "s40")
        if pace: e("s_waitcnt vmcnt(8)")
        issueK(1, "s47")
        if pace: e("s_waitcnt vmcnt(8)")
        issueV(1, "s47")

    e("s_cmp_eq_u32 s3, 0")
    e("s_cbranch_scc1 L_u_rest")
    if qfirst: e("s_barrier")
    prefetch()
    stamp(1)
    e.label("L_u_rest")
    unit_index()
    e("s_cmp_lg_u32 s52, 0")
    e("s_cselect_b32 s41, 0, 64")
    e("s_sub_u32 s40, s40, s41")
    e("s_cmp_lg_u32 s52, 0")
    e("s_cselect_b32 s41, 3, 4")
    e("s_cselect_b32 s47, 7, 15")
    e("s_cselect_b32 s54, 11, 10")
    e("s_cselect_b32 s55, 0, 0x20000")
    e("s_cselect_b32 s68, 10, 9")
    e("s_cselect_b32 s69, 0, 0x10000")
    e("s_lshr_b32 s42, s40, s41")
    e("s_and_b32 s53, s40, s47")
    e("s_lshl_b32 s41, s53, s54")
    e("s_lshl_b32 s47, s42, 14")
    e("s_add_u32 s41, s41, s47")
    e("s_add_u32 s41, s41, s55")
    e(f"s_add_u32 s41, s41, {WS_QG}")
    e("s_add_u32 s48, s28, s41")
    e("s_addc_u32 s49, s29, 0")
    e("s_lshl_b32 s41, s53, s68")
    e("s_lshl_b32 s47, s42, 13")
    e("s_add_u32 s41, s41, s47")
    e("s_add_u32 s41, s41, s69")
    e(f"s_add_u32 s41, s41, {WS_O}")
    e("s_add_u32 s50, s28, s41")
    e("s_addc_u32 s51, s29, 0")
    e(f"s_mov_b32 s44, {SCALE}")
    e("s_mov_b32 s45, 0x05040100")
    e("s_mov_b32 s46, 0x07060302")
    e("v_and_b32 v23, 3, v3")
    e("v_lshlrev_b32 v23, 2, v23")
    e(f"v_lshrrev_b32 v{T2}, 2, v3")
    e(f"v_add_u32 v23, v23, v{T2}")
    e("v_lshlrev_b32 v23, 9, v23")
    e("v_add_u32 v23, s43, v23")
    for jj in range(4):
        e(f"v_add_u32 v{T2}, {4*jj}, v2")
        e(f"v_xor_b32 v{T2}, v{T2}, v3")
        e(f"v_lshl_add_u32 v{KA+jj}, v{T2}, 4, v23")
    e(f"v_mov_b32 v{vTK}, {LDS_TK}")
    e(f"v_mov_b32 v{vONE}, 1")
    e("v_cmp_eq_u32 vcc, 0, v1")
    e(f"v_mov_b32 v{vM}, 0xff800000")
    e(f"v_mov_b32 v{vL}, 0")
    e(f"v_cndmask_b32 v{vTINC}, 0, 1, vcc")
    e(f"v_mov_b32 v{vNMC}, 0")
    for i in range(64):
        e(f"v_mov_b32 v{ACC+i}, 0")
    e("s_cmp_lg_u32 s3, 0")
    e("s_cbranch_scc1 L_u_bar")
    e.c("---- wave 0: wait for this unit's q granules")
    e("v_lshlrev_b32 v2, 4, v1")
    e("s_cmp_lg_u32 s52, 0")
    e("s_cselect_b32 s41, 1024, 0")
    e("v_add_u32 v3, s41, v2")
    e(f"s_mov_b32 s56, {spin}")
    e.label("L_u_poll")
    e(f"global_load_dwordx4 v[24:27], v2, s[48:49] sc1")
    e(f"global_load_dwordx4 v[28:31], v3, s[48:49] sc1")
    e("s_waitcnt vmcnt(0)")
    e("v_cmp_eq_u32 vcc, s30, v26")
    e("v_cmp_eq_u32 s[54:55], s31, v27")
    e("v_cmp_eq_u32 s[68:69], s30, v30")
    e("v_cmp_eq_u32 s[70:71], s31, v31")
    e("s_nop 1")
    e("s_and_b64 s[54:55], s[54:55], vcc")
    e("s_and_b64 s[68:69], s[68:69], s[70:71]")
    e("s_and_b64 s[54:55], s[54:55], s[68:69]")
    e("s_cmp_eq_u64 s[54:55], -1")
    e("s_cbranch_scc1 L_u_qready")
    if sleep_q: e(f"s_sleep {sleep_q}")
    e("s_sub_u32 s56, s56, 1")
    e("s_cmp_lg_u32 s56, 0")
    e("s_cbranch_scc1 L_u_poll")
    e.label("L_u_qready")
    e("v_lshlrev_b32 v2, 3, v1")
    e(f"v_add_u32 v2, {LDS_Q}, v2")
    e("ds_write_b64 v2, v[24:25]")
    e("ds_write_b64 v2, v[28:29] offset:512")
    e("v_mov_b32 v2, 8")
    e("v_mov_b32 v3, s30")
    e(f"ds_write_b64 v{vTK}, v[2:3]")
    stamp(8)
    if prio: e("s_setprio 0")
    e("s_waitcnt lgkmcnt(0)")
    e("s_barrier")
    prefetch()
    stamp(1)
    e("s_branch L_u_go")
    e.label("L_u_bar")
    e("s_barrier")
    e.label("L_u_go")
    dstamp(12, 64)
    stamp(2)
    e("v_and_b32 v2, 1, v1")
    e("v_lshlrev_b32 v2, 9, v2")
    e("v_lshrrev_b32 v3, 4, v1")
    e("v_lshl_add_u32 v2, v3, 4, v2")
    e(f"v_add_u32 v2, {LDS_Q}, v2")
    for j in range(8):
        e(f"ds_read_b128 a[{aQ+4*j}:{aQ+4*j+3}], v2 offset:{j*64}")
    if win:
        e(f"ds_read_b32 v{vPV}, v{vTK} offset:4")
        e(f"s_add_u32 s92, s28, {WS_PROG}")
        e("s_addc_u32 s93, s29, 0")
        e("s_sub_u32 s94, s2, 64")
        e(f"v_and_b32 v{vPA}, 7, v1")
        e(f"v_lshlrev_b32 v{vPA}, 2, v{vPA}")
        e("s_lshl_b32 s41, s3, 7")
        e(f"v_add_u32 v{vPA}, s41, v{vPA}")
        e("s_waitcnt lgkmcnt(0)")
        e(f"v_readfirstlane_b32 s95, v{vPV}")
        e("s_nop 3")
        e("s_lshl_b32 s95, s95, 8")

    def prog_min():
        e(f"v_xor_b32 v{vPV}, s95, v{vPV}")
        e(f"v_cmp_gt_u32 vcc, 256, v{vPV}")
        e("s_nop 1")
        e(f"v_cndmask_b32 v{vPV}, 8, v{vPV}, vcc")
        e("s_nop 1")
        e(f"v_min_u32_dpp v{vPV}, v{vPV}, v{vPV} quad_perm:[1,0,3,2] row_mask:0xf bank_mask:0xf")
        e("s_nop 1")
        e(f"v_min_u32_dpp v{vPV}, v{vPV}, v{vPV} quad_perm:[2,3,0,1] row_mask:0xf bank_mask:0xf")
        e("s_nop 1")
        e(f"v_min_u32_dpp v{vPV}, v{vPV}, v{vPV} row_half_mirror row_mask:0xf bank_mask:0xf")
        e("s_nop 0")
        e(f"v_readfirstlane_b32 s68, v{vPV}")
        e("s_nop 3")
        e(f"s_add_u32 s68, s68, {win}")
    def prog_gate(u):
        e(f"s_cmp_ge_u32 s41, {NT - 8}")
        e(f"s_cbranch_scc1 L_go_{u}")
        prog_min()
        e("s_cmp_le_u32 s41, s68")
        e(f"s_cbranch_scc1 L_go_{u}")
        e(f"s_mov_b32 s56, {spin}")
        e.label(f"L_gate_{u}")
        e(f"global_load_dword v{vPV}, v{vPA}, s[92:93] sc1")
        e("s_waitcnt vmcnt(0)")
        prog_min()
        e("s_cmp_le_u32 s41, s68")
        e(f"s_cbranch_scc1 L_go_{u}")
        e("s_sleep 2")
        e("s_sub_u32 s56, s56, 1")
        e("s_cmp_lg_u32 s56, 0")
        e(f"s_cbranch_scc1 L_gate_{u}")
        e.label(f"L_go_{u}")
    def prog_publish(u):
        e("s_cmp_ge_u32 s94, 8")
        e(f"s_cbranch_scc1 L_nopub_{u}")
        if not puball:
            e("s_cmp_lg_u32 s3, 0")
            e(f"s_cbranch_scc1 L_nopub_{u}")
        e("s_min_u32 s68, s41, 255")
        e("s_or_b32 s68, s68, s95")
        e("s_lshl_b32 s54, s94, 2")
        e(f"v_lshlrev_b32 v{T2}, 7, v1")
        e(f"v_add_u32 v{T2}, s54, v{T2}")
        e(f"v_mov_b32 v{T3}, s68")
        e("s_mov_b64 exec, 15")
        e(f"global_store_dword v{T2}, v{T3}, s[92:93] sc1")
        e("s_mov_b64 exec, -1")
        e.label(f"L_nopub_{u}")

    uid = [0]
    def step(slot, kind):
        uid[0] += 1
        u = uid[0]
        steady = kind == "steady"
        if steady and steptime:
            e("s_memrealtime s[62:63]")
            e(f"s_lshr_b32 s68, s57, {1 if nact <= 2 else 0}")
            e("s_min_u32 s68, s68, 39")
            e("s_add_u32 s68, s68, 24")
            e("s_mov_b32 m0, s68")
            e("s_waitcnt lgkmcnt(0)")
            e("v_writelane_b32 v254, s62, m0")
            e("s_add_u32 s57, s57, 1")
        if steady: pf(6)
        if mode == "alt":
            wk = {'first0':48, 'first1':16, 'steady':0}[kind]
            wv = {'first0':32, 'first1':0, 'steady':0}[kind]
        else:
            wk = {'first0':48, 'first1':16, 'steady':16}[kind]
            wv = {'first0':32, 'first1':16, 'steady':16}[kind]
        tick = kind != "first0"
        if tick:
            if nact < 4 and kind == "first1":
                e(f"s_cmp_ge_u32 s3, {nact}")
                e(f"s_cbranch_scc1 L_notick_{u}")
            e(f"ds_add_rtn_u32 v{T3}, v{vTK}, v{vTINC}")
            if nact < 4 and kind == "first1":
                e.label(f"L_notick_{u}")
        if False:
            pass
        elif earlyv and steady and mode == "alt" and not split:
            e("s_cmp_eq_u32 s71, 0")
            e(f"s_cbranch_scc1 L_ev0_{u}")
            e("s_waitcnt vmcnt(16)")
            e(f"s_branch L_ev1_{u}")
            e.label(f"L_ev0_{u}")
            e("s_waitcnt vmcnt(0)")
            if win: e(f"global_load_dword v{vPV}, v{vPA}, s[92:93] sc1")
            issueV(slot, "s40")
            e.label(f"L_ev1_{u}")
        else:
            e(f"s_waitcnt vmcnt({wk})")
        if steady: pf(0)
        if mode == "alt" and steady and not (earlyv and not split):
            if split:
                if split in (1, 3):
                    issueK(slot, "s40", 8, 16)
                    e("s_waitcnt vmcnt(0)")
                if split in (1, 2): issueV(slot, "s40", 0, 4)
                else: issueV(slot, "s40")
            else:
                issueV(slot, "s40")
        if steady: pf(1)
        so = slot * 16384
        def rd(j):
            for t in range(2):
                r = aK + (j * 2 + t) * 4
                e(f"ds_read_b128 a[{r}:{r+3}], v{KA + (j & 3)} offset:{so + t*8192 + (j>>2)*256}")
        def mf(j):
            for t in range(2):
                r = aK + (j * 2 + t) * 4
                c_ = "0" if j == 0 else f"v[{S0+4*t}:{S0+4*t+3}]"
                e(f"v_mfma_f32_16x16x32_bf16 v[{S0+4*t}:{S0+4*t+3}], a[{r}:{r+3}], a[{aQ+4*j}:{aQ+4*j+3}], {c_}")
        for j in range(6): rd(j)
        e("s_waitcnt lgkmcnt(8)")
        mf(0); mf(1)
        rd(6); rd(7)
        e("s_waitcnt lgkmcnt(8)")
        mf(2); mf(3)
        e("s_waitcnt lgkmcnt(4)")
        mf(4); mf(5)
        e("s_waitcnt lgkmcnt(0)")
        mf(6); mf(7)
        if tick:
            e(f"v_readfirstlane_b32 s41, v{T3}")
            if nact < 4 and kind == "first1":
                e(f"s_cmp_ge_u32 s3, {nact}")
                e(f"s_cselect_b32 s41, {NT}, s41")

        if mode == "mid" and tick:
            e(f"s_cmp_ge_u32 s41, {NT}")
            e(f"s_cbranch_scc1 L_last_{u}")
            e("s_lshl_b32 s40, s41, 14")
            issueK(slot ^ 1, "s40")
        def softmax_pv(tag, wv_, after_v, after_pv):
            e("s_nop 7")
            e(f"v_max3_f32 v{T0}, v{S0}, v{S0+1}, v{S0+2}")
            e(f"v_max3_f32 v{T1}, v{S0+3}, v{S0+4}, v{S0+5}")
            e(f"v_max3_f32 v{T0}, v{S0+6}, v{S0+7}, v{T0}")
            e(f"v_max_f32 v{T0}, v{T0}, v{T1}")
            e(f"v_mov_b32 v{T1}, v{T0}")
            e("s_nop 1")
            e(f"v_permlane16_swap_b32 v{T1}, v{T0}")
            e(f"v_max_f32 v{T0}, v{T0}, v{T1}")
            e(f"v_mov_b32 v{T1}, v{T0}")
            e("s_nop 1")
            e(f"v_permlane32_swap_b32 v{T1}, v{T0}")
            e(f"v_max3_f32 v{T0}, v{T0}, v{T1}, v{vM}")
            e(f"v_cmp_gt_f32 vcc, v{T0}, v{vM}")
            e(f"s_cbranch_vccz L_norescale_{tag}")
            e(f"v_sub_f32 v{T1}, v{vM}, v{T0}")
            e(f"v_mul_f32 v{T1}, s44, v{T1}")
            e(f"v_exp_f32 v{T1}, v{T1}")
            e(f"v_mov_b32 v{vM}, v{T0}")
            e(f"v_mul_f32 v{vNMC}, s44, v{T0}")
            e(f"v_mul_f32 v{vL}, v{vL}, v{T1}")
            e(f"v_sub_f32 v{vNMC}, 0, v{vNMC}")
            for i in range(64):
                e(f"v_mul_f32 v{ACC+i}, v{ACC+i}, v{T1}")
            e.label(f"L_norescale_{tag}")
            for i in range(8):
                e(f"v_fma_f32 v{S0+i}, v{S0+i}, s44, v{vNMC}")
            for i in range(8):
                e(f"v_exp_f32 v{S0+i}, v{S0+i}")
            e("s_nop 0")
            e(f"v_add_f32 v{T0}, v{S0}, v{S0+1}")
            e(f"v_add_f32 v{T1}, v{S0+2}, v{S0+3}")
            e(f"v_add_f32 v{T2}, v{S0+4}, v{S0+5}")
            e(f"v_cvt_pk_bf16_f32 v{PP}, v{S0}, v{S0+1}")
            e(f"v_add_f32 v{T0}, v{T0}, v{T1}")
            e(f"v_add_f32 v{T1}, v{S0+6}, v{S0+7}")
            e(f"v_cvt_pk_bf16_f32 v{PP+1}, v{S0+2}, v{S0+3}")
            e(f"v_add_f32 v{T2}, v{T2}, v{T1}")
            e(f"v_cvt_pk_bf16_f32 v{PP+2}, v{S0+4}, v{S0+5}")
            e(f"v_add_f32 v{T0}, v{T0}, v{T2}")
            e(f"v_cvt_pk_bf16_f32 v{PP+3}, v{S0+6}, v{S0+7}")
            e(f"v_add_f32 v{vL}, v{vL}, v{T0}")
            if steady: pf(2)
            e(f"s_waitcnt vmcnt({wv_})")
            if steady and split in (1, 2) and mode == "alt":
                issueV(slot, "s40", 4, 8)
                e("s_waitcnt vmcnt(0)")
            if steady: pf(3)
            after_v()
            if steady: pf(4)
            vb = VB[slot]
            def perms(j, ee, tb):
                sel = "s45" if (ee & 1) == 0 else "s46"
                for ip in range(4):
                    lo = vb + ((2 * ip) * 2 + j) * 4 + (ee >> 1)
                    hi = vb + ((2 * ip + 1) * 2 + j) * 4 + (ee >> 1)
                    e(f"v_perm_b32 v{tb+ip}, v{hi}, v{lo}, {sel}")
            seq = [(j, ee) for j in range(2) for ee in range(8)]
            perms(*seq[0], TT)
            for idx, (j, ee) in enumerate(seq):
                tb = TT + 4 * (idx % 3)
                if idx + 1 < len(seq):
                    perms(*seq[idx + 1], TT + 4 * ((idx + 1) % 3))
                else:
                    e("s_nop 1")
                a = ACC + (j * 8 + ee) * 4
                e(f"v_mfma_f32_16x16x32_bf16 v[{a}:{a+3}], v[{tb}:{tb+3}], v[{PP}:{PP+3}], v[{a}:{a+3}]")
            after_pv()
            if steady: pf(5)
        if mode == "alt":
            def av():
                if kind != "first0":
                    if win: prog_publish(u)
                    e(f"s_cmp_ge_u32 s41, {NT}")
                    e(f"s_cbranch_scc1 L_nok_{u}")
                    if win and steady: prog_gate(u)
                    e("s_lshl_b32 s40, s41, 14")
                    if split in (1, 3): issueK(slot ^ 1, "s40", 0, 8)
                    else: issueK(slot ^ 1, "s40")
                    if earlyv and not split:
                        e(f"s_cmp_ge_u32 s41, {earlyv}")
                        e("s_cselect_b32 s71, 1, 0")
                        e(f"s_cbranch_scc0 L_nok_{u}")
                        issueV(slot ^ 1, "s40")
                    e.label(f"L_nok_{u}")
            softmax_pv(u, wv, av, lambda: None)
            if kind != "first0":
                e(f"s_cmp_ge_u32 s41, {NT}")
                e("s_cbranch_scc1 L_u_done")
        else:
            if kind == "first0":
                softmax_pv(u, wv, lambda: None, lambda: None)
            else:
                softmax_pv(u, wv, lambda: None, lambda: issueV(slot ^ 1, "s40"))
                e(f"s_branch L_next_{u}")
                e.label(f"L_last_{u}")
                softmax_pv(f"{u}b", 0, lambda: None, lambda: None)
                e("s_branch L_u_done")
                e.label(f"L_next_{u}")

    e("s_mov_b32 s71, 0")
    e("s_waitcnt lgkmcnt(0)")
    step(0, "first0")
    step(1, "first1")
    if prof:
        for k in range(8): e(f"s_mov_b32 s{84+k}, 0")
        e("s_memtime s[64:65]")
        e("s_waitcnt lgkmcnt(0)")
        e("s_mov_b32 s67, s64")
    if steptime: e("s_mov_b32 s57, 0")
    e.label("L_u_loop")
    step(0, "steady")
    step(1, "steady")
    e("s_branch L_u_loop")
    e.label("L_u_done")
    stamp(3)
    if prof:
        for k in range(7): e(f"v_writelane_b32 v254, s{84+k}, {16+k}")
    if steptime:
        e("v_writelane_b32 v254, s57, 23")
        e(f"s_mov_b32 s68, {1 if nact <= 2 else 0}")
        e("v_writelane_b32 v254, s68, 15")
    e.c("---- every wave leaves (m, l) and its unscaled accumulators in LDS")
    e("s_cmp_lg_u32 s3, 0")
    e("s_cbranch_scc1 L_u_noh")
    e(f"v_lshlrev_b32 v{vTINC}, 3, v1")
    e(f"s_add_u32 s58, s28, {WS_H}")
    e("s_addc_u32 s59, s29, 0")
    e(f"global_load_dwordx2 v[{T2}:{T3}], v{vTINC}, s[58:59] sc1")
    e.label("L_u_noh")
    e(f"v_mov_b32 v{T1}, v{vL}")
    e("s_nop 1")
    e(f"v_permlane16_swap_b32 v{T1}, v{vL}")
    e(f"v_add_f32 v{vL}, v{vL}, v{T1}")
    e(f"v_mov_b32 v{T1}, v{vL}")
    e("s_nop 1")
    e(f"v_permlane32_swap_b32 v{T1}, v{vL}")
    e(f"v_add_f32 v{vL}, v{vL}, v{T1}")
    e("v_and_b32 v2, 1, v1")
    e("v_lshlrev_b32 v3, 3, v2")
    e(f"v_add_u32 v3, {LDS_ST}, v3")
    e("s_lshl_b32 s41, s3, 4")
    e("v_add_u32 v3, s41, v3")
    e("v_lshlrev_b32 v2, 10, v2")
    e("v_lshrrev_b32 v23, 4, v1")
    e("v_lshl_add_u32 v2, v23, 7, v2")
    e("v_add_u32 v2, s43, v2")
    e("s_mov_b32 exec_lo, 0x00030003")
    e("s_mov_b32 exec_hi, 0x00030003")
    for j in range(2):
        for r in range(4):
            for ee in range(0, 8, 2):
                o0 = j * 128 + r * 8 + ee
                e(f"ds_write2_b32 v2, v{ACC + (j*8+ee)*4 + r}, v{ACC + (j*8+ee+1)*4 + r} offset0:{o0} offset1:{o0+1}")
    e("s_mov_b64 exec, 3")
    e(f"ds_write_b64 v3, v[{vM}:{vL}]")
    e("s_mov_b64 exec, -1")
    e("s_waitcnt lgkmcnt(0)")
    e("s_barrier")
    stamp(9)
    e("s_cmp_lg_u32 s3, 0")
    e("s_cbranch_scc1 L_u_exit")
    e("v_lshrrev_b32 v2, 5, v1")
    e("v_lshlrev_b32 v2, 3, v2")
    e(f"v_add_u32 v2, {LDS_ST}, v2")
    for w in range(4):
        e(f"ds_read_b64 v[{S0+2*w}:{S0+2*w+1}], v2 offset:{w*16}")
    e("v_lshlrev_b32 v2, 5, v1")
    e("v_add_u32 v3, 0x10000, v2")
    for w in range(4):
        vr = "v2" if w < 2 else "v3"
        e(f"ds_read_b128 v[{ACC+8*w}:{ACC+8*w+3}], {vr} offset:{(w&1)*32768}")
        e(f"ds_read_b128 v[{ACC+8*w+4}:{ACC+8*w+7}], {vr} offset:{(w&1)*32768+16}")
    e("s_waitcnt lgkmcnt(8)")
    e(f"v_max3_f32 v{T0}, v{S0}, v{S0+2}, v{S0+4}")
    e(f"v_max_f32 v{T0}, v{T0}, v{S0+6}")
    for w in range(4):
        e(f"v_sub_f32 v{S0+2*w}, v{S0+2*w}, v{T0}")
    for w in range(4):
        e(f"v_mul_f32 v{S0+2*w}, s44, v{S0+2*w}")
    for w in range(4):
        e(f"v_exp_f32 v{S0+2*w}, v{S0+2*w}")
    e("s_nop 0")
    e(f"v_mul_f32 v{T1}, v{S0}, v{S0+1}")
    e(f"v_fma_f32 v{T1}, v{S0+2}, v{S0+3}, v{T1}")
    e(f"v_fma_f32 v{T1}, v{S0+4}, v{S0+5}, v{T1}")
    e(f"v_fma_f32 v{T1}, v{S0+6}, v{S0+7}, v{T1}")
    e(f"v_rcp_f32 v{T1}, v{T1}")
    e("s_nop 0")
    for w in range(4):
        e(f"v_mul_f32 v{S0+2*w}, v{S0+2*w}, v{T1}")
    e("s_waitcnt lgkmcnt(0)")
    for i in range(8):
        e(f"v_mul_f32 v{ACC+i}, v{ACC+i}, v{S0}")
    for w in range(1, 4):
        for i in range(8):
            e(f"v_fma_f32 v{ACC+i}, v{ACC+8*w+i}, v{S0+2*w}, v{ACC+i}")
    for i in range(4):
        e(f"v_cvt_pk_bf16_f32 v{PP+i}, v{ACC+2*i}, v{ACC+2*i+1}")
    e("v_lshlrev_b32 v2, 4, v1")
    e("s_cmp_lg_u32 s52, 0")
    e("s_cbranch_scc1 L_u_storeA")
    e("s_mov_b32 exec_hi, 0")
    e.label("L_u_storeA")
    e(f"global_store_dwordx4 v2, v[{PP}:{PP+3}], s[50:51] sc1")
    e("s_mov_b64 exec, -1")
    e("s_cmp_lg_u32 s52, 0")
    e("s_cselect_b32 s41, 1, 2")
    e("s_cselect_b32 s47, 1, 3")
    e("s_cselect_b32 s54, 0, 4")
    e("s_lshr_b32 s41, s53, s41")
    e("s_add_u32 s41, s41, s54")
    e("s_lshl_b32 s41, s41, 7")
    e("s_and_b32 s47, s53, s47")
    e("s_lshl_b32 s47, s47, 2")
    e("s_add_u32 s41, s41, s47")
    e("v_lshlrev_b32 v2, 10, v1")
    e("v_add_u32 v2, s41, v2")
    e(f"s_mov_b32 s56, {spin}")
    e.label("L_u_hchk")
    e("s_waitcnt vmcnt(0)")
    e(f"v_cmp_eq_u32 vcc, s30, v{T2}")
    e(f"v_cmp_eq_u32 s[54:55], s31, v{T3}")
    e("s_nop 1")
    e("s_and_b64 s[54:55], s[54:55], vcc")
    e("s_cmp_eq_u64 s[54:55], -1")
    e("s_cbranch_scc1 L_u_sig")
    e(f"global_load_dwordx2 v[{T2}:{T3}], v{vTINC}, s[58:59] sc1")
    e("s_sub_u32 s56, s56, 1")
    e("s_cmp_lg_u32 s56, 0")
    e("s_cbranch_scc1 L_u_hchk")
    e.label("L_u_sig")
    stamp(10)
    e(f"s_add_u32 s58, s28, {WS_REP}")
    e("s_addc_u32 s59, s29, 0")
    e(f"s_mov_b64 exec, {(1 << nrep) - 1}")
    e(f"global_atomic_add v2, v{vONE}, s[58:59] sc1")
    e("s_mov_b64 exec, -1")
    e.label("L_u_exit")
    dstamp(4, 128, 8)
    stamp(4)
    stamp_flush()
    e("s_endpgm")

    WB, QA = 112, 48
    e.label("L_helper0")
    e.c("---- wave 0 of a helper: clear the replica line, then say so")
    e("s_lshl_b32 s47, s2, 7")
    e(f"s_add_u32 s47, s47, {WS_REP}")
    e("s_add_u32 s58, s28, s47")
    e("s_addc_u32 s59, s29, 0")
    e(f"s_cmp_ge_u32 s2, {8 * nrep}")
    e("s_cbranch_scc1 L_h_nozero")
    e("v_and_b32 v6, 31, v1")
    e("v_lshlrev_b32 v6, 2, v6")
    e("v_mov_b32 v7, 0")
    e("global_store_dword v6, v7, s[58:59] sc1")
    e.label("L_h_nozero")
    e("s_waitcnt vmcnt(0)")
    e("s_lshl_b32 s47, s2, 3")
    e(f"s_add_u32 s47, s47, {WS_H}")
    e("v_mov_b32 v6, s47")
    e("s_mov_b64 exec, 1")
    e("global_store_dwordx2 v6, v[38:39], s[28:29] sc1")
    e("s_mov_b64 exec, -1")
    e(f"v_mov_b32 v6, {LDS_RED + 2048}")
    e("ds_write_b64 v6, v[38:39]")
    e("s_waitcnt lgkmcnt(0)")
    if prio: e("s_setprio 0")
    stamp(2)
    e("s_branch L_h_join")
    e.label("L_h_join0")
    if codepf:
        e("s_getpc_b64 s[40:41]")
        e.label("L_pc")
        e(f"s_add_u32 s40, s40, {KN}-L_pc")
        e("s_addc_u32 s41, s41, -1")
        e("s_sub_u32 s42, s3, 1")
        e("s_lshl_b32 s42, s42, 10")
        e("v_lshlrev_b32 v2, 4, v1")
        e("v_add_u32 v2, s42, v2")
        e(f"s_mov_b32 s42, (L_end-{KN})/3072")
        e.label("L_pf")
        e("global_load_dwordx4 v[200:203], v2, s[40:41]")
        e("v_add_u32 v2, 3072, v2")
        e("s_sub_u32 s42, s42, 1")
        e("s_cmp_lg_u32 s42, 0")
        e("s_cbranch_scc1 L_pf")
    if qfirst: e("s_barrier")
    e.label("L_h_join")
    e("s_barrier")
    if womap:
        e("s_lshr_b32 s53, s2, 3")
        e("s_and_b32 s52, s2, 7")
        e("s_lshr_b32 s47, s53, 2")
        e("s_lshl_b32 s54, s52, 1")
        e("s_add_u32 s54, s54, s47")
        e("s_add_u32 s55, s52, 6")
        e("s_cmp_ge_u32 s52, 6")
        e("s_cselect_b32 s54, s55, s54")
        e("s_cselect_b32 s47, s47, 0")
        e("s_cmp_lg_u32 s47, 0")
        e("s_cbranch_scc1 L_h_keeper")
        e("s_cmp_ge_u32 s54, 7")
        e("s_cselect_b32 s40, 1, 0")
        e("s_cselect_b32 s47, 7, 0")
        e("s_sub_u32 s54, s54, s47")
        e("s_lshl_b32 s54, s54, 2")
        e("s_and_b32 s47, s53, 3")
        e("s_add_u32 s41, s54, s47")
    else:
        e("s_lshr_b32 s53, s2, 3")
        e("s_and_b32 s52, s2, 7")
        e("s_mul_i32 s52, s52, 7")
        e("s_add_u32 s52, s52, s53")
        e("s_cmp_eq_u32 s53, 7")
        e("s_cbranch_scc1 L_h_keeper")
        e("s_cmp_ge_u32 s52, 28")
        e("s_cselect_b32 s40, 1, 0")
        e("s_cselect_b32 s47, 28, 0")
        e("s_sub_u32 s41, s52, s47")
    e(f"s_and_b32 s47, s41, {nrep - 1}")
    e("s_lshl_b32 s47, s47, 3")
    e("s_lshl_b32 s58, s40, 2")
    e("s_add_u32 s47, s47, s58")
    e("s_add_u32 s47, s47, s3")
    e("s_lshl_b32 s47, s47, 7")
    e(f"s_add_u32 s47, s47, {WS_REP}")
    e("s_add_u32 s58, s28, s47")
    e("s_addc_u32 s59, s29, 0")
    e("s_cmp_eq_u32 s40, 0")
    e("s_cselect_b32 s36, s12, s22")
    e("s_cselect_b32 s37, s13, s23")
    e("s_and_b32 s37, s37, 0xffff")
    e("s_mov_b32 s38, 3670016")
    e("s_mov_b32 s39, 0x20000")
    e("v_lshrrev_b32 v2, 4, v1")
    e("v_and_b32 v3, 15, v1")
    e("v_lshrrev_b32 v6, 1, v1")
    e("v_mul_u32_u24 v6, 896, v6")
    e("v_and_b32 v7, 1, v1")
    e("v_lshl_add_u32 v6, v7, 4, v6")
    e("s_mul_i32 s42, s3, 917504")
    e("s_lshl_b32 s47, s41, 5")
    e("s_add_u32 s42, s42, s47")
    e("s_lshl_b32 s43, s3, 15")
    def wo_fetch(lo, hi):
        for n in range(lo, hi):
            e(f"s_add_u32 s47, s42, {n*32*896}")
            e(f"s_add_u32 m0, s43, {n*1024}")
            e("s_nop 0")
            e(f"buffer_load_dwordx4 v6, s[36:39], s47 offen {woflags} lds")
        e("s_waitcnt vmcnt(0)")
        stamp(3)
        for ks in range(lo, hi):
            e(f"ds_read_b64_tr_b16 a[{4*ks}:{4*ks+1}], v7 offset:{ks*1024}")
            e(f"ds_read_b64_tr_b16 a[{4*ks+2}:{4*ks+3}], v7 offset:{ks*1024+128}")
            if ks % 4 == 3:
                e("s_waitcnt lgkmcnt(0)")
        e("s_waitcnt lgkmcnt(0)")
    e("v_lshrrev_b32 v7, 2, v3")
    e("v_lshlrev_b32 v7, 5, v7")
    e("v_and_b32 v8, 3, v3")
    e("v_lshl_add_u32 v7, v8, 3, v7")
    e("v_lshl_add_u32 v7, v2, 8, v7")
    e("v_add_u32 v7, s43, v7")
    if not wolate: wo_fetch(0, 32)
    elif woearly: wo_fetch(0, woearly)
    e("v_and_b32 v9, 3, v1")
    e("v_lshlrev_b32 v9, 2, v9")
    e("s_lshl_b32 s47, s40, 16")
    e(f"s_add_u32 s47, s47, {WS_O}")
    e("s_add_u32 s48, s28, s47")
    e("s_addc_u32 s49, s29, 0")
    e("v_and_b32 v10, 7, v1")
    e("v_lshlrev_b32 v10, 13, v10")
    e("v_lshl_add_u32 v10, v2, 4, v10")
    e("s_lshl_b32 s47, s3, 11")
    e("v_add_u32 v10, s47, v10")
    for hh in range(4):
        e("s_cmp_eq_u32 s40, 0")
        e(f"s_cselect_b32 s{72+hh}, {hh >> 1}, {hh}")
    e(f"v_mov_b32 v12, {LDS_RED + 2048}")
    e("ds_read_b64 v[14:15], v12")
    e("s_sub_u32 s47, s58, s28")
    e(f"s_sub_u32 s47, s47, {WS_REP}")
    e("s_lshr_b32 s47, s47, 4")
    e(f"s_add_u32 s47, s47, {WS_H}")
    e("v_mov_b32 v12, s47")
    e(f"s_mov_b32 s56, {spin}")
    e.label("L_h_hw")
    e("global_load_dwordx2 v[16:17], v12, s[28:29] sc1")
    e("s_waitcnt vmcnt(0) lgkmcnt(0)")
    e("v_cmp_eq_u32 vcc, v14, v16")
    e("v_cmp_eq_u32 s[54:55], v15, v17")
    e("s_nop 1")
    e("s_and_b64 s[54:55], s[54:55], vcc")
    e("s_cmp_eq_u64 s[54:55], -1")
    e("s_cbranch_scc1 L_h_hok")
    e("s_sleep 4")
    e("s_sub_u32 s56, s56, 1")
    e("s_cmp_lg_u32 s56, 0")
    e("s_cbranch_scc1 L_h_hw")
    e.label("L_h_hok")
    if wolate:
        e(f"s_mov_b32 s56, {spin}")
        e.label("L_h_first")
        e("global_load_dword v11, v9, s[58:59] sc1")
        e("s_waitcnt vmcnt(0)")
        e(f"v_cmp_le_u32 vcc, {wolate}, v11")
        e("s_cbranch_vccnz L_h_first_ok")
        e(f"s_sleep {sleep_o}")
        e("s_sub_u32 s56, s56, 1")
        e("s_cmp_lg_u32 s56, 0")
        e("s_cbranch_scc1 L_h_first")
        e.label("L_h_first_ok")
        wo_fetch(woearly, 32)
    e("s_mov_b32 s57, 15")
    e(f"s_mov_b32 s56, {spin}")
    e.label("L_h_poll")
    e("global_load_dword v11, v9, s[58:59] sc1")
    e("s_waitcnt vmcnt(0)")
    for hh in range(4):
        e(f"s_bitcmp1_b32 s57, {hh}")
        e(f"s_cbranch_scc0 L_h_skip{hh}")
        e(f"v_readlane_b32 s68, v11, s{72+hh}")
        e("s_nop 3")
        e("s_cmp_lt_u32 s68, 8")
        e(f"s_cbranch_scc1 L_h_skip{hh}")
        e(f"s_bitset0_b32 s57, {hh}")
        e("s_mov_b32 exec_lo, 0x00ff00ff")
        e("s_mov_b32 exec_hi, 0x00ff00ff")
        for ks in range(8 * hh, 8 * hh + 8):
            r = WB + 4 * ks
            e(f"global_load_dwordx4 v[{r}:{r+3}], v10, s[48:49] offset:{ks*64} sc1")
        e("s_mov_b64 exec, -1")
        e.label(f"L_h_skip{hh}")
    e("s_cmp_eq_u32 s57, 0")
    e("s_cbranch_scc1 L_h_ready")
    if sleep_o: e(f"s_sleep {sleep_o}")
    e("s_sub_u32 s56, s56, 1")
    e("s_cmp_lg_u32 s56, 0")
    e("s_cbranch_scc1 L_h_poll")
    e.label("L_h_ready")
    stamp(4)
    e("s_waitcnt vmcnt(0)")
    stamp(11)
    for ks in range(32):
        r = WB + 4 * ks
        a = QA + 4 * (ks % 4)
        c_ = "0" if ks < 4 else f"v[{a}:{a+3}]"
        e(f"v_mfma_f32_16x16x32_bf16 v[{a}:{a+3}], v[{r}:{r+3}], a[{4*ks}:{4*ks+3}], {c_}")
    e("v_lshlrev_b32 v6, 8, v2")
    e("v_lshl_add_u32 v6, v3, 2, v6")
    e("s_lshl_b32 s47, s3, 9")
    e(f"s_add_u32 s47, s47, {LDS_RED}")
    e("v_add_u32 v6, s47, v6")
    e("s_nop 7")
    for i in range(4):
        e(f"v_add_f32 v{QA+i}, v{QA+i}, v{QA+4+i}")
        e(f"v_add_f32 v{QA+8+i}, v{QA+8+i}, v{QA+12+i}")
    for i in range(4):
        e(f"v_add_f32 v{QA+i}, v{QA+i}, v{QA+8+i}")
    e("s_mov_b32 exec_hi, 0")
    for r in range(4):
        e(f"ds_write_b32 v6, v{QA+r} offset:{r*64}")
    e("s_mov_b64 exec, -1")
    e("s_waitcnt lgkmcnt(0)")
    e("s_barrier")
    e("s_cmp_lg_u32 s3, 0")
    e("s_cbranch_scc1 L_h_exit")
    e("v_lshlrev_b32 v6, 3, v1")
    e(f"v_add_u32 v6, {LDS_RED}, v6")
    for w in range(4):
        e(f"ds_read_b64 v[{QA+2*w}:{QA+2*w+1}], v6 offset:{w*512}")
    e("v_lshrrev_b32 v6, 3, v1")
    e("v_mul_u32_u24 v6, 1792, v6")
    e("v_and_b32 v7, 7, v1")
    e("v_lshl_add_u32 v6, v7, 2, v6")
    e("s_mul_i32 s47, s40, 896")
    e("s_lshl_b32 s48, s41, 5")
    e("s_add_u32 s47, s47, s48")
    e("v_add_u32 v6, s47, v6")
    e("s_waitcnt lgkmcnt(0)")
    e(f"v_add_f32 v{QA}, v{QA}, v{QA+2}")
    e(f"v_add_f32 v{QA+1}, v{QA+1}, v{QA+3}")
    e(f"v_add_f32 v{QA+4}, v{QA+4}, v{QA+6}")
    e(f"v_add_f32 v{QA+5}, v{QA+5}, v{QA+7}")
    e(f"v_add_f32 v{QA}, v{QA}, v{QA+4}")
    e(f"v_add_f32 v{QA+1}, v{QA+1}, v{QA+5}")
    e(f"v_cvt_pk_bf16_f32 v{QA}, v{QA}, v{QA+1}")
    e(f"global_store_dword v6, v{QA}, s[24:25] {outflags}")
    e("s_branch L_h_exit")

    e.label("L_h_keeper")
    e.c("---- wg 56, wave 0: once every unit and helper is past its use of the epoch word, advance it")
    e(f"s_cmp_lg_u32 s2, {62 if womap else 56}")
    e("s_cbranch_scc1 L_h_exit")
    e("s_cmp_lg_u32 s3, 0")
    e("s_cbranch_scc1 L_h_exit")
    e("v_min_u32 v2, 23, v1")
    e("v_cmp_gt_u32 vcc, 8, v2")
    e("v_lshrrev_b32 v3, 1, v2")
    e("v_lshlrev_b32 v3, 7, v3")
    e("v_and_b32 v4, 1, v2")
    e("v_lshl_add_u32 v3, v4, 2, v3")
    e("v_subrev_u32 v4, 8, v2")
    e("v_lshrrev_b32 v5, 2, v4")
    e("v_add_u32 v5, 4, v5")
    e("v_lshlrev_b32 v5, 7, v5")
    e("v_and_b32 v4, 3, v4")
    e("v_lshl_add_u32 v4, v4, 2, v5")
    e("v_cndmask_b32 v3, v4, v3, vcc")
    e(f"v_add_u32 v3, {WS_REP}, v3")
    e("v_lshlrev_b32 v4, 3, v1")
    e(f"v_add_u32 v4, {WS_H}, v4")
    e(f"s_mov_b32 s56, {spin}")
    e.label("L_k_h")
    e("global_load_dwordx2 v[6:7], v4, s[28:29] sc1")
    e("s_waitcnt vmcnt(0)")
    e("v_cmp_eq_u32 s[54:55], s30, v6")
    e("v_cmp_eq_u32 s[68:69], s31, v7")
    e("s_nop 1")
    e("s_and_b64 s[54:55], s[54:55], s[68:69]")
    e("s_cmp_eq_u64 s[54:55], -1")
    e("s_cbranch_scc1 L_k_h2")
    e("s_sleep 8")
    e("s_sub_u32 s56, s56, 1")
    e("s_cmp_lg_u32 s56, 0")
    e("s_cbranch_scc1 L_k_h")
    e.label("L_k_h2")
    e(f"s_mov_b32 s56, {spin}")
    e.label("L_k_poll")
    e("global_load_dword v5, v3, s[28:29] sc1")
    e("s_waitcnt vmcnt(0)")
    e("v_cmp_gt_u32 vcc, 8, v5")
    e("s_cbranch_vccz L_k_done")
    e("s_sleep 8")
    e("s_sub_u32 s56, s56, 1")
    e("s_cmp_lg_u32 s56, 0")
    e("s_cbranch_scc1 L_k_poll")
    e.label("L_k_done")
    e("v_mov_b32 v2, 0")
    e("v_mov_b32 v6, s30")
    e("v_mov_b32 v7, s31")
    e("s_mov_b64 exec, 1")
    e(f"global_store_dwordx2 v2, v[6:7], s[28:29] offset:{WS_EPOCH} sc1")
    e("s_mov_b64 exec, -1")
    e.label("L_h_exit")
    dstamp(1, 0)
    dstamp(2, 30)
    dstamp(3, 17)
    stamp(5)
    stamp_flush()
    e.label("L_end")
    e("s_endpgm")
    e.l.append('.section .rodata,"a"')
    e.l.append(".p2align 6")
    e.l.append(f".amdhsa_kernel {KN}")
    e.l.append("  .amdhsa_next_free_vgpr 384")
    e.l.append("  .amdhsa_next_free_sgpr 96")
    e.l.append("  .amdhsa_accum_offset 256")
    e.l.append("  .amdhsa_group_segment_fixed_size 0")
    e.l.append("  .amdhsa_kernarg_size 104")
    e.l.append("  .amdhsa_user_sgpr_count 2")
    e.l.append("  .amdhsa_user_sgpr_kernarg_segment_ptr 1")
    e.l.append("  .amdhsa_system_sgpr_workgroup_id_x 1")
    e.l.append(".end_amdhsa_kernel")
    return "\n".join(e.l) + "\n"

if __name__ == "__main__":
    kw = dict(a.split("=") for a in sys.argv[2:])
    for k in kw:
        try: kw[k] = int(kw[k])
        except: kw[k] = kw[k].replace("+", " ")
    for k in list(kw):
        if kw[k] == "none": kw[k] = ""
    open(sys.argv[1], "w").write(gen(**kw))
```

```python
import sys
KN = "concat_heads__gqa_block_cached__mha_block_cached__decode_kernel"

HEADER = """; Fused decode attention (two problems: GQA 'A' and MHA 'B') for gfx950, one launch.
;                      16-byte {4 x bf16, 64-bit epoch} granules that the consumers validate by their tag
"""

class G:
    def __init__(self):
        self.l = []
    def __call__(self, s):
        self.l.append("  " + s)
    def label(self, s):
        self.l.append(s + ":")
    def c(self, s):
        self.l.append("  ; " + s)

def gen(stamps=0, spin=1 << 18, kflags="nt", vflags="nt", wqflags="nt", woflags="nt", sleep_q=1, sleep_o=4, mode="alt",
        prof=0, steptime=0, nact=4, prio=1, pace=0, qfirst=1, win=0, dbg=0, outflags="", split=0, nrep=1, qloop=1, earlyv=124, puball=0, womap=1, umap="lin", codepf=0, wolate=1, woearly=20, rnds=1):
    e = G()
    LDS_Q, LDS_TK, LDS_ST, LDS_QT, LDS_RED = 131072, 132096, 132128, 133120, 135168
    LDS_BYTES = 139264
    WS_EPOCH, WS_H, WS_REP, WS_QG, WS_O, WS_STAMP = 0, 0x1000, 0x2000, 0x10000, 0x60000, 0x20000000
    WS_PROG = 0x4000
    vPA, vPV = 244, 245
    NT = 128
    SCALE = 0x3DB8AA3B

    def stamp(idx):
        if not stamps: return
        e("s_memrealtime s[62:63]")
        e("s_waitcnt lgkmcnt(0)")
        e(f"v_writelane_b32 v254, s62, {idx}")
    def stamp_flush():
        if not stamps: return
        e("s_lshl_b32 s60, s2, 10")
        e("s_lshl_b32 s61, s3, 8")
        e("s_add_u32 s60, s60, s61")
        e(f"s_add_u32 s62, s28, {WS_STAMP}")
        e("s_addc_u32 s63, s29, 0")
        e("s_add_u32 s62, s62, s60")
        e("s_addc_u32 s63, s63, 0")
        e("v_mbcnt_lo_u32_b32 v253, -1, 0")
        e("v_mbcnt_hi_u32_b32 v253, -1, v253")
        e("v_lshlrev_b32 v253, 2, v253")
        e("global_store_dword v253, v254, s[62:63]")
    dcount = [0]
    def dstamp(word, wg, nwg=1):
        if not dbg: return
        dcount[0] += 1
        u = dcount[0]
        e("s_cmp_lg_u32 s3, 0")
        e(f"s_cbranch_scc1 L_ds_{u}")
        e(f"s_sub_u32 s61, s2, {wg}")
        e(f"s_cmp_ge_u32 s61, {nwg}")
        e(f"s_cbranch_scc1 L_ds_{u}")
        e("s_memrealtime s[62:63]")
        e(f"s_add_u32 s61, s61, {word}")
        e("s_lshl_b32 s61, s61, 2")
        e("s_waitcnt lgkmcnt(0)")
        e("v_mov_b32 v252, s62")
        e("v_mov_b32 v251, s61")
        e("s_mov_b64 exec, 1")
        e("global_store_dword v251, v252, s[26:27]")
        e("s_mov_b64 exec, -1")
        e.label(f"L_ds_{u}")
    def pf(k):
        if not prof: return
        e("s_memtime s[64:65]")
        e("s_waitcnt lgkmcnt(0)")
        e("s_sub_u32 s66, s64, s67")
        e(f"s_add_u32 s{84+k}, s{84+k}, s66")
        e("s_mov_b32 s67, s64")

    e.l.append(HEADER.rstrip("\n"))
    e.l.append(f"; @launch grid=(256,1,1) block=(256,1,1) lds={LDS_BYTES}")
    e.l.append('.amdgcn_target "amdgcn-amd-amdhsa--gfx950"')
    e.l.append(".text")
    e.l.append(f".globl {KN}")
    e.l.append(".p2align 8")
    e.l.append(f".type {KN},@function")
    e.label(KN)
    e("s_cmp_ge_u32 s2, 256")
    e("s_cbranch_scc1 L_end")
    e("s_load_dwordx16 s[4:19], s[0:1], 0")
    e("s_load_dwordx8 s[20:27], s[0:1], 64")
    e("s_load_dwordx2 s[28:29], s[0:1], 96")
    if stamps:
        e("v_mov_b32 v254, 0")
    e("v_lshrrev_b32 v2, 6, v0")
    e("v_and_b32 v1, 63, v0")
    e("v_readfirstlane_b32 s3, v2")
    stamp(0)
    e("s_waitcnt lgkmcnt(0)")
    dstamp(0, 0)
    dstamp(13, 255)
    e("s_cmp_eq_u32 s3, 0")
    e("s_cbranch_scc1 L_qslice")
    e("s_cmp_lt_u32 s2, 64")
    e("s_cbranch_scc1 L_h_join0")
    e("s_branch L_unit_setup")

    XF, BQ = 48, 112
    T0, T1, T2, T3 = 240, 241, 242, 243
    e.label("L_qslice")
    if prio: e("s_setprio 3")
    e("s_and_b32 s40, s2, 7")
    e("s_lshl_b32 s40, s40, 5")
    e("s_lshr_b32 s41, s2, 3")
    e("s_add_u32 s40, s40, s41")
    e("s_lshr_b32 s80, s40, 7")
    e("s_and_b32 s81, s40, 127")
    e("s_cmp_eq_u32 s80, 0")
    e("s_cselect_b32 s72, s4, s14")
    e("s_cselect_b32 s73, s5, s15")
    e("s_cselect_b32 s76, s10, s20")
    e("s_cselect_b32 s77, s11, s21")
    e("s_and_b32 s73, s73, 0xffff")
    e("s_and_b32 s77, s77, 0xffff")
    e("s_mov_b32 s74, 7168")
    e("s_mov_b32 s75, 0x20000")
    e("s_mov_b32 s78, 3670016")
    e("s_mov_b32 s79, 0x20000")
    e("v_lshrrev_b32 v2, 2, v1")
    e("v_lshlrev_b32 v2, 13, v2")
    e("v_and_b32 v3, 3, v1")
    e("v_lshl_add_u32 v2, v3, 4, v2")
    e("s_lshl_b32 s41, s81, 6")
    if qloop:
        e("s_mov_b32 m0, 0")
        e("s_mov_b32 s42, 28")
        e.label("L_qdma")
        e(f"buffer_load_dwordx4 v2, s[76:79], s41 offen {wqflags} lds")
        e("s_add_u32 s41, s41, 131072")
        e("s_add_u32 m0, m0, 1024")
        e("s_sub_u32 s42, s42, 1")
        e("s_cmp_lg_u32 s42, 0")
        e("s_cbranch_scc1 L_qdma")
    else:
        for n in range(28):
            e(f"s_add_u32 s42, s41, {n*131072}")
            e(f"s_mov_b32 m0, {n*1024}")
            e("s_nop 0")
            e(f"buffer_load_dwordx4 v2, s[76:79], s42 offen {wqflags} lds")
    e("v_and_b32 v4, 7, v1")
    e("v_mul_u32_u24 v4, 896, v4")
    e("v_lshrrev_b32 v5, 4, v1")
    e("v_lshl_add_u32 v4, v5, 4, v4")
    for ks in range(14):
        e(f"buffer_load_dwordx4 v[{XF+4*ks}:{XF+4*ks+3}], v4, s[72:75], 0 offen offset:{ks*64}")
    e("v_mov_b32 v6, 0")
    e(f"global_load_dwordx2 v[{T0}:{T1}], v6, s[28:29] offset:{WS_EPOCH} sc1")
    if qfirst: e("s_barrier")
    e("v_and_b32 v3, 15, v1")
    e("v_lshrrev_b32 v6, 2, v3")
    e("v_lshlrev_b32 v6, 6, v6")
    e("v_and_b32 v7, 3, v3")
    e("v_lshl_add_u32 v6, v7, 3, v6")
    e("v_lshl_add_u32 v6, v5, 9, v6")
    e("s_waitcnt vmcnt(0)")
    stamp(6)
    e(f"v_readfirstlane_b32 s30, v{T0}")
    e(f"v_readfirstlane_b32 s31, v{T1}")
    def trread(ks):
        for ct in range(2):
            r = BQ + (ks * 2 + ct) * 4
            e(f"ds_read_b64_tr_b16 v[{r}:{r+1}], v6 offset:{ks*2048 + ct*32}")
            e(f"ds_read_b64_tr_b16 v[{r+2}:{r+3}], v6 offset:{ks*2048 + ct*32 + 256}")
    def qmf(ks):
        for ct in range(2):
            r = BQ + (ks * 2 + ct) * 4
            d = 24 + 4 * ct
            c_ = "0" if ks == 0 else f"v[{d}:{d+3}]"
            e(f"v_mfma_f32_16x16x32_bf16 v[{d}:{d+3}], v[{XF+4*ks}:{XF+4*ks+3}], v[{r}:{r+3}], {c_}")
    for ks in range(3): trread(ks)
    e("s_add_u32 s30, s30, 1")
    e("s_addc_u32 s31, s31, 0")
    for ks in range(14):
        left = min(14, ks + 3) - (ks + 1)
        e(f"s_waitcnt lgkmcnt({4*left})")
        qmf(ks)
        if ks + 3 < 14: trread(ks + 3)
    e("v_lshlrev_b32 v6, 9, v5")
    e("v_lshl_add_u32 v6, v3, 2, v6")
    e(f"v_add_u32 v6, {LDS_QT}, v6")
    e("s_nop 7")
    e("s_mov_b32 exec_hi, 0")
    for ct in range(2):
        for r in range(4):
            e(f"ds_write_b32 v6, v{24+4*ct+r} offset:{r*128 + ct*64}")
    e("s_mov_b64 exec, -1")
    e("v_lshlrev_b32 v6, 4, v1")
    e(f"v_add_u32 v6, {LDS_QT}, v6")
    e("s_waitcnt lgkmcnt(0)")
    e("ds_read_b128 v[32:35], v6")
    e("v_lshrrev_b32 v6, 3, v1")
    e("v_lshlrev_b32 v6, 14, v6")
    e("v_and_b32 v7, 7, v1")
    e("v_lshl_add_u32 v6, v7, 4, v6")
    e("s_lshl_b32 s41, s80, 17")
    e("s_lshl_b32 s42, s81, 7")
    e("s_add_u32 s41, s41, s42")
    e(f"s_add_u32 s41, s41, {WS_QG}")
    e("s_add_u32 s82, s28, s41")
    e("s_addc_u32 s83, s29, 0")
    e("v_mov_b32 v38, s30")
    e("v_mov_b32 v39, s31")
    e("s_waitcnt lgkmcnt(0)")
    e("v_cvt_pk_bf16_f32 v36, v32, v33")
    e("v_cvt_pk_bf16_f32 v37, v34, v35")
    e("global_store_dwordx4 v6, v[36:39], s[82:83] sc1")
    stamp(7)
    e("s_cmp_lt_u32 s2, 64")
    e("s_cbranch_scc1 L_helper0")

    KV = 4
    VV = 12
    KA = 13
    vM, vL, vNMC, vTK, vONE, vTINC = 18, 19, 20, 21, 22, 17
    S0, PP, TT, ACC, VB = 24, 32, 36, 48, (112, 176)
    aK, aQ = 0, 64
    def unit_index():
        e("s_sub_u32 s40, s2, 64")
        if umap == "xcd":
            e("s_and_b32 s41, s40, 7")
            e("s_mul_i32 s41, s41, 24")
            e("s_lshr_b32 s40, s40, 3")
            e("s_add_u32 s40, s40, s41")
        elif umap == "swz":
            e("s_lshr_b32 s41, s40, 3")
            e("s_and_b32 s41, s41, 7")
            e("s_xor_b32 s40, s40, s41")
        elif umap == "mix":
            e("s_mul_i32 s40, s40, 37")
            e("s_mul_hi_u32 s41, s40, 0x1555556")
            e("s_mul_i32 s41, s41, 192")
            e("s_sub_u32 s40, s40, s41")
    e.label("L_unit_setup")
    unit_index()
    e("s_cmp_lt_u32 s40, 64")
    e("s_cselect_b32 s52, 1, 0")
    e("s_cselect_b32 s32, s6, s16")
    e("s_cselect_b32 s33, s7, s17")
    e("s_cselect_b32 s36, s8, s18")
    e("s_cselect_b32 s37, s9, s19")
    e("s_cselect_b32 s41, 0, 64")
    e("s_sub_u32 s40, s40, s41")
    e("s_lshl_b32 s41, s40, 21")
    e("s_add_u32 s32, s32, s41")
    e("s_addc_u32 s33, s33, 0")
    e("s_add_u32 s36, s36, s41")
    e("s_addc_u32 s37, s37, 0")
    e("s_and_b32 s33, s33, 0xffff")
    e("s_and_b32 s37, s37, 0xffff")
    e("s_mov_b32 s34, 0x200000")
    e("s_mov_b32 s35, 0x20000")
    e("s_mov_b32 s38, 0x200000")
    e("s_mov_b32 s39, 0x20000")
    e("s_lshl_b32 s43, s3, 15")
    e("v_lshrrev_b32 v2, 5, v1")
    e("v_and_b32 v3, 31, v1")
    e("v_lshlrev_b32 v23, 2, v2")
    e("v_xor_b32 v3, v3, v23")
    e("v_lshlrev_b32 v3, 4, v3")
    e("v_lshl_add_u32 v3, v2, 9, v3")
    for n in range(8):
        cst = (8 * (n & 1) + ((n >> 1) & 3)) * 16
        e(f"v_xor_b32 v{KV+n}, {cst}, v3")
    e("v_lshrrev_b32 v2, 4, v1")
    e("v_and_b32 v3, 15, v1")
    e("v_lshlrev_b32 v23, 4, v3")
    e(f"v_lshl_add_u32 v{VV}, v2, 9, v23")

    def issueK(slot, soff, lo=0, hi=16):
        for n in range(lo, hi):
            if n % 4 == 0:
                e(f"s_add_u32 s42, {soff}, {(n//4)*4096}")
                e(f"s_add_u32 m0, s43, {slot*16384 + (n//4)*4096}")
                e("s_nop 0")
            e(f"buffer_load_dwordx4 v{KV + (n & 7)}, s[32:35], s42 offen offset:{(n%4)*1024} {kflags} lds")
    def issueV(slot, soff, lo=0, hi=8):
        for i in range(lo, hi):
            if i % 2 == 0:
                e(f"s_add_u32 s42, {soff}, {(i//2)*4096}")
            for j in range(2):
                r = VB[slot] + (i * 2 + j) * 4
                e(f"buffer_load_dwordx4 v[{r}:{r+3}], v{VV}, s[36:39], s42 offen offset:{(i%2)*2048 + j*256} {vflags}")
    def prefetch():
        e("s_lshl_b32 s40, s3, 14")
        e("s_add_u32 s47, s40, 0x10000")
        issueK(0, "s40")
        if pace: e("s_waitcnt vmcnt(8)")
        issueV(0, "s40")
        if pace: e("s_waitcnt vmcnt(8)")
        issueK(1, "s47")
        if pace: e("s_waitcnt vmcnt(8)")
        issueV(1, "s47")

    e("s_cmp_eq_u32 s3, 0")
    e("s_cbranch_scc1 L_u_rest")
    if qfirst: e("s_barrier")
    prefetch()
    stamp(1)
    e.label("L_u_rest")
    unit_index()
    e("s_cmp_lg_u32 s52, 0")
    e("s_cselect_b32 s41, 0, 64")
    e("s_sub_u32 s40, s40, s41")
    e("s_cmp_lg_u32 s52, 0")
    e("s_cselect_b32 s41, 3, 4")
    e("s_cselect_b32 s47, 7, 15")
    e("s_cselect_b32 s54, 11, 10")
    e("s_cselect_b32 s55, 0, 0x20000")
    e("s_cselect_b32 s68, 10, 9")
    e("s_cselect_b32 s69, 0, 0x10000")
    e("s_lshr_b32 s42, s40, s41")
    e("s_and_b32 s53, s40, s47")
    e("s_lshl_b32 s41, s53, s54")
    e("s_lshl_b32 s47, s42, 14")
    e("s_add_u32 s41, s41, s47")
    e("s_add_u32 s41, s41, s55")
    e(f"s_add_u32 s41, s41, {WS_QG}")
    e("s_add_u32 s48, s28, s41")
    e("s_addc_u32 s49, s29, 0")
    e("s_lshl_b32 s41, s53, s68")
    e("s_lshl_b32 s47, s42, 13")
    e("s_add_u32 s41, s41, s47")
    e("s_add_u32 s41, s41, s69")
    e(f"s_add_u32 s41, s41, {WS_O}")
    e("s_add_u32 s50, s28, s41")
    e("s_addc_u32 s51, s29, 0")
    e(f"s_mov_b32 s44, {SCALE}")
    e("s_mov_b32 s45, 0x05040100")
    e("s_mov_b32 s46, 0x07060302")
    e("v_and_b32 v23, 3, v3")
    e("v_lshlrev_b32 v23, 2, v23")
    e(f"v_lshrrev_b32 v{T2}, 2, v3")
    e(f"v_add_u32 v23, v23, v{T2}")
    e("v_lshlrev_b32 v23, 9, v23")
    e("v_add_u32 v23, s43, v23")
    for jj in range(4):
        e(f"v_add_u32 v{T2}, {4*jj}, v2")
        e(f"v_xor_b32 v{T2}, v{T2}, v3")
        e(f"v_lshl_add_u32 v{KA+jj}, v{T2}, 4, v23")
    e(f"v_mov_b32 v{vTK}, {LDS_TK}")
    e(f"v_mov_b32 v{vONE}, 1")
    e("v_cmp_eq_u32 vcc, 0, v1")
    e(f"v_mov_b32 v{vM}, 0xff800000")
    e(f"v_mov_b32 v{vL}, 0")
    e(f"v_cndmask_b32 v{vTINC}, 0, 1, vcc")
    e(f"v_mov_b32 v{vNMC}, 0")
    for i in range(64):
        e(f"v_mov_b32 v{ACC+i}, 0")
    e("s_cmp_lg_u32 s3, 0")
    e("s_cbranch_scc1 L_u_bar")
    e.c("---- wave 0: wait for this unit's q granules")
    e("v_lshlrev_b32 v2, 4, v1")
    e("s_cmp_lg_u32 s52, 0")
    e("s_cselect_b32 s41, 1024, 0")
    e("v_add_u32 v3, s41, v2")
    e(f"s_mov_b32 s56, {spin}")
    e.label("L_u_poll")
    e(f"global_load_dwordx4 v[24:27], v2, s[48:49] sc1")
    e(f"global_load_dwordx4 v[28:31], v3, s[48:49] sc1")
    e("s_waitcnt vmcnt(0)")
    e("v_cmp_eq_u32 vcc, s30, v26")
    e("v_cmp_eq_u32 s[54:55], s31, v27")
    e("v_cmp_eq_u32 s[68:69], s30, v30")
    e("v_cmp_eq_u32 s[70:71], s31, v31")
    e("s_nop 1")
    e("s_and_b64 s[54:55], s[54:55], vcc")
    e("s_and_b64 s[68:69], s[68:69], s[70:71]")
    e("s_and_b64 s[54:55], s[54:55], s[68:69]")
    e("s_cmp_eq_u64 s[54:55], -1")
    e("s_cbranch_scc1 L_u_qready")
    if sleep_q: e(f"s_sleep {sleep_q}")
    e("s_sub_u32 s56, s56, 1")
    e("s_cmp_lg_u32 s56, 0")
    e("s_cbranch_scc1 L_u_poll")
    e.label("L_u_qready")
    e("v_lshlrev_b32 v2, 3, v1")
    e(f"v_add_u32 v2, {LDS_Q}, v2")
    e("ds_write_b64 v2, v[24:25]")
    e("ds_write_b64 v2, v[28:29] offset:512")
    e("v_mov_b32 v2, 8")
    e("v_mov_b32 v3, s30")
    e(f"ds_write_b64 v{vTK}, v[2:3]")
    stamp(8)
    if prio: e("s_setprio 0")
    e("s_waitcnt lgkmcnt(0)")
    e("s_barrier")
    prefetch()
    stamp(1)
    e("s_branch L_u_go")
    e.label("L_u_bar")
    e("s_barrier")
    e.label("L_u_go")
    dstamp(12, 64)
    stamp(2)
    e("v_and_b32 v2, 1, v1")
    e("v_lshlrev_b32 v2, 9, v2")
    e("v_lshrrev_b32 v3, 4, v1")
    e("v_lshl_add_u32 v2, v3, 4, v2")
    e(f"v_add_u32 v2, {LDS_Q}, v2")
    for j in range(8):
        e(f"ds_read_b128 a[{aQ+4*j}:{aQ+4*j+3}], v2 offset:{j*64}")
    if win:
        e(f"ds_read_b32 v{vPV}, v{vTK} offset:4")
        e(f"s_add_u32 s92, s28, {WS_PROG}")
        e("s_addc_u32 s93, s29, 0")
        e("s_sub_u32 s94, s2, 64")
        e(f"v_and_b32 v{vPA}, 7, v1")
        e(f"v_lshlrev_b32 v{vPA}, 2, v{vPA}")
        e("s_lshl_b32 s41, s3, 7")
        e(f"v_add_u32 v{vPA}, s41, v{vPA}")
        e("s_waitcnt lgkmcnt(0)")
        e(f"v_readfirstlane_b32 s95, v{vPV}")
        e("s_nop 3")
        e("s_lshl_b32 s95, s95, 8")

    def prog_min():
        e(f"v_xor_b32 v{vPV}, s95, v{vPV}")
        e(f"v_cmp_gt_u32 vcc, 256, v{vPV}")
        e("s_nop 1")
        e(f"v_cndmask_b32 v{vPV}, 8, v{vPV}, vcc")
        e("s_nop 1")
        e(f"v_min_u32_dpp v{vPV}, v{vPV}, v{vPV} quad_perm:[1,0,3,2] row_mask:0xf bank_mask:0xf")
        e("s_nop 1")
        e(f"v_min_u32_dpp v{vPV}, v{vPV}, v{vPV} quad_perm:[2,3,0,1] row_mask:0xf bank_mask:0xf")
        e("s_nop 1")
        e(f"v_min_u32_dpp v{vPV}, v{vPV}, v{vPV} row_half_mirror row_mask:0xf bank_mask:0xf")
        e("s_nop 0")
        e(f"v_readfirstlane_b32 s68, v{vPV}")
        e("s_nop 3")
        e(f"s_add_u32 s68, s68, {win}")
    def prog_gate(u):
        e(f"s_cmp_ge_u32 s41, {NT - 8}")
        e(f"s_cbranch_scc1 L_go_{u}")
        prog_min()
        e("s_cmp_le_u32 s41, s68")
        e(f"s_cbranch_scc1 L_go_{u}")
        e(f"s_mov_b32 s56, {spin}")
        e.label(f"L_gate_{u}")
        e(f"global_load_dword v{vPV}, v{vPA}, s[92:93] sc1")
        e("s_waitcnt vmcnt(0)")
        prog_min()
        e("s_cmp_le_u32 s41, s68")
        e(f"s_cbranch_scc1 L_go_{u}")
        e("s_sleep 2")
        e("s_sub_u32 s56, s56, 1")
        e("s_cmp_lg_u32 s56, 0")
        e(f"s_cbranch_scc1 L_gate_{u}")
        e.label(f"L_go_{u}")
    def prog_publish(u):
        e("s_cmp_ge_u32 s94, 8")
        e(f"s_cbranch_scc1 L_nopub_{u}")
        if not puball:
            e("s_cmp_lg_u32 s3, 0")
            e(f"s_cbranch_scc1 L_nopub_{u}")
        e("s_min_u32 s68, s41, 255")
        e("s_or_b32 s68, s68, s95")
        e("s_lshl_b32 s54, s94, 2")
        e(f"v_lshlrev_b32 v{T2}, 7, v1")
        e(f"v_add_u32 v{T2}, s54, v{T2}")
        e(f"v_mov_b32 v{T3}, s68")
        e("s_mov_b64 exec, 15")
        e(f"global_store_dword v{T2}, v{T3}, s[92:93] sc1")
        e("s_mov_b64 exec, -1")
        e.label(f"L_nopub_{u}")

    uid = [0]
    def step(slot, kind):
        uid[0] += 1
        u = uid[0]
        steady = kind == "steady"
        if steady and steptime:
            e("s_memrealtime s[62:63]")
            e(f"s_lshr_b32 s68, s57, {1 if nact <= 2 else 0}")
            e("s_min_u32 s68, s68, 39")
            e("s_add_u32 s68, s68, 24")
            e("s_mov_b32 m0, s68")
            e("s_waitcnt lgkmcnt(0)")
            e("v_writelane_b32 v254, s62, m0")
            e("s_add_u32 s57, s57, 1")
        if steady: pf(6)
        if mode == "alt":
            wk = {'first0':48, 'first1':16, 'steady':0}[kind]
            wv = {'first0':32, 'first1':0, 'steady':0}[kind]
        else:
            wk = {'first0':48, 'first1':16, 'steady':16}[kind]
            wv = {'first0':32, 'first1':16, 'steady':16}[kind]
        tick = kind != "first0"
        if tick:
            if nact < 4 and kind == "first1":
                e(f"s_cmp_ge_u32 s3, {nact}")
                e(f"s_cbranch_scc1 L_notick_{u}")
            e(f"ds_add_rtn_u32 v{T3}, v{vTK}, v{vTINC}")
            if nact < 4 and kind == "first1":
                e.label(f"L_notick_{u}")
        if False:
            pass
        elif earlyv and steady and mode == "alt" and not split:
            e("s_cmp_eq_u32 s71, 0")
            e(f"s_cbranch_scc1 L_ev0_{u}")
            e("s_waitcnt vmcnt(16)")
            e(f"s_branch L_ev1_{u}")
            e.label(f"L_ev0_{u}")
            e("s_waitcnt vmcnt(0)")
            if win: e(f"global_load_dword v{vPV}, v{vPA}, s[92:93] sc1")
            issueV(slot, "s40")
            e.label(f"L_ev1_{u}")
        else:
            e(f"s_waitcnt vmcnt({wk})")
        if steady: pf(0)
        if mode == "alt" and steady and not (earlyv and not split):
            if split:
                if split in (1, 3):
                    issueK(slot, "s40", 8, 16)
                    e("s_waitcnt vmcnt(0)")
                if split in (1, 2): issueV(slot, "s40", 0, 4)
                else: issueV(slot, "s40")
            else:
                issueV(slot, "s40")
        if steady: pf(1)
        so = slot * 16384
        def rd(j):
            for t in range(2):
                r = aK + (j * 2 + t) * 4
                e(f"ds_read_b128 a[{r}:{r+3}], v{KA + (j & 3)} offset:{so + t*8192 + (j>>2)*256}")
        def mf(j):
            for t in range(2):
                r = aK + (j * 2 + t) * 4
                c_ = "0" if j == 0 else f"v[{S0+4*t}:{S0+4*t+3}]"
                e(f"v_mfma_f32_16x16x32_bf16 v[{S0+4*t}:{S0+4*t+3}], a[{r}:{r+3}], a[{aQ+4*j}:{aQ+4*j+3}], {c_}")
        for j in range(6): rd(j)
        e("s_waitcnt lgkmcnt(8)")
        mf(0); mf(1)
        rd(6); rd(7)
        e("s_waitcnt lgkmcnt(8)")
        mf(2); mf(3)
        e("s_waitcnt lgkmcnt(4)")
        mf(4); mf(5)
        e("s_waitcnt lgkmcnt(0)")
        mf(6); mf(7)
        if tick:
            e(f"v_readfirstlane_b32 s41, v{T3}")
            if nact < 4 and kind == "first1":
                e(f"s_cmp_ge_u32 s3, {nact}")
                e(f"s_cselect_b32 s41, {NT}, s41")

        if mode == "mid" and tick:
            e(f"s_cmp_ge_u32 s41, {NT}")
            e(f"s_cbranch_scc1 L_last_{u}")
            e("s_lshl_b32 s40, s41, 14")
            issueK(slot ^ 1, "s40")
        def softmax_pv(tag, wv_, after_v, after_pv):
            e("s_nop 7")
            if rnds:
                for i in range(4):
                    e(f"v_cvt_pk_bf16_f32 v{PP+i}, v{S0+2*i}, v{S0+2*i+1}")
                for i in range(4):
                    e(f"v_lshlrev_b32 v{S0+2*i}, 16, v{PP+i}")
                    e(f"v_and_b32 v{S0+2*i+1}, 0xffff0000, v{PP+i}")
            e(f"v_max3_f32 v{T0}, v{S0}, v{S0+1}, v{S0+2}")
            e(f"v_max3_f32 v{T1}, v{S0+3}, v{S0+4}, v{S0+5}")
            e(f"v_max3_f32 v{T0}, v{S0+6}, v{S0+7}, v{T0}")
            e(f"v_max_f32 v{T0}, v{T0}, v{T1}")
            e(f"v_mov_b32 v{T1}, v{T0}")
            e("s_nop 1")
            e(f"v_permlane16_swap_b32 v{T1}, v{T0}")
            e(f"v_max_f32 v{T0}, v{T0}, v{T1}")
            e(f"v_mov_b32 v{T1}, v{T0}")
            e("s_nop 1")
            e(f"v_permlane32_swap_b32 v{T1}, v{T0}")
            e(f"v_max3_f32 v{T0}, v{T0}, v{T1}, v{vM}")
            e(f"v_cmp_gt_f32 vcc, v{T0}, v{vM}")
            e(f"s_cbranch_vccz L_norescale_{tag}")
            e(f"v_sub_f32 v{T1}, v{vM}, v{T0}")
            e(f"v_mul_f32 v{T1}, s44, v{T1}")
            e(f"v_exp_f32 v{T1}, v{T1}")
            e(f"v_mov_b32 v{vM}, v{T0}")
            e(f"v_mul_f32 v{vNMC}, s44, v{T0}")
            e(f"v_mul_f32 v{vL}, v{vL}, v{T1}")
            e(f"v_sub_f32 v{vNMC}, 0, v{vNMC}")
            for i in range(64):
                e(f"v_mul_f32 v{ACC+i}, v{ACC+i}, v{T1}")
            e.label(f"L_norescale_{tag}")
            for i in range(8):
                e(f"v_fma_f32 v{S0+i}, v{S0+i}, s44, v{vNMC}")
            for i in range(8):
                e(f"v_exp_f32 v{S0+i}, v{S0+i}")
            e("s_nop 0")
            e(f"v_add_f32 v{T0}, v{S0}, v{S0+1}")
            e(f"v_add_f32 v{T1}, v{S0+2}, v{S0+3}")
            e(f"v_add_f32 v{T2}, v{S0+4}, v{S0+5}")
            e(f"v_cvt_pk_bf16_f32 v{PP}, v{S0}, v{S0+1}")
            e(f"v_add_f32 v{T0}, v{T0}, v{T1}")
            e(f"v_add_f32 v{T1}, v{S0+6}, v{S0+7}")
            e(f"v_cvt_pk_bf16_f32 v{PP+1}, v{S0+2}, v{S0+3}")
            e(f"v_add_f32 v{T2}, v{T2}, v{T1}")
            e(f"v_cvt_pk_bf16_f32 v{PP+2}, v{S0+4}, v{S0+5}")
            e(f"v_add_f32 v{T0}, v{T0}, v{T2}")
            e(f"v_cvt_pk_bf16_f32 v{PP+3}, v{S0+6}, v{S0+7}")
            e(f"v_add_f32 v{vL}, v{vL}, v{T0}")
            if steady: pf(2)
            e(f"s_waitcnt vmcnt({wv_})")
            if steady and split in (1, 2) and mode == "alt":
                issueV(slot, "s40", 4, 8)
                e("s_waitcnt vmcnt(0)")
            if steady: pf(3)
            after_v()
            if steady: pf(4)
            vb = VB[slot]
            def perms(j, ee, tb):
                sel = "s45" if (ee & 1) == 0 else "s46"
                for ip in range(4):
                    lo = vb + ((2 * ip) * 2 + j) * 4 + (ee >> 1)
                    hi = vb + ((2 * ip + 1) * 2 + j) * 4 + (ee >> 1)
                    e(f"v_perm_b32 v{tb+ip}, v{hi}, v{lo}, {sel}")
            seq = [(j, ee) for j in range(2) for ee in range(8)]
            perms(*seq[0], TT)
            for idx, (j, ee) in enumerate(seq):
                tb = TT + 4 * (idx % 3)
                if idx + 1 < len(seq):
                    perms(*seq[idx + 1], TT + 4 * ((idx + 1) % 3))
                else:
                    e("s_nop 1")
                a = ACC + (j * 8 + ee) * 4
                e(f"v_mfma_f32_16x16x32_bf16 v[{a}:{a+3}], v[{tb}:{tb+3}], v[{PP}:{PP+3}], v[{a}:{a+3}]")
            after_pv()
            if steady: pf(5)
        if mode == "alt":
            def av():
                if kind != "first0":
                    if win: prog_publish(u)
                    e(f"s_cmp_ge_u32 s41, {NT}")
                    e(f"s_cbranch_scc1 L_nok_{u}")
                    if win and steady: prog_gate(u)
                    e("s_lshl_b32 s40, s41, 14")
                    if split in (1, 3): issueK(slot ^ 1, "s40", 0, 8)
                    else: issueK(slot ^ 1, "s40")
                    if earlyv and not split:
                        e(f"s_cmp_ge_u32 s41, {earlyv}")
                        e("s_cselect_b32 s71, 1, 0")
                        e(f"s_cbranch_scc0 L_nok_{u}")
                        issueV(slot ^ 1, "s40")
                    e.label(f"L_nok_{u}")
            softmax_pv(u, wv, av, lambda: None)
            if kind != "first0":
                e(f"s_cmp_ge_u32 s41, {NT}")
                e("s_cbranch_scc1 L_u_done")
        else:
            if kind == "first0":
                softmax_pv(u, wv, lambda: None, lambda: None)
            else:
                softmax_pv(u, wv, lambda: None, lambda: issueV(slot ^ 1, "s40"))
                e(f"s_branch L_next_{u}")
                e.label(f"L_last_{u}")
                softmax_pv(f"{u}b", 0, lambda: None, lambda: None)
                e("s_branch L_u_done")
                e.label(f"L_next_{u}")

    e("s_mov_b32 s71, 0")
    e("s_waitcnt lgkmcnt(0)")
    step(0, "first0")
    step(1, "first1")
    if prof:
        for k in range(8): e(f"s_mov_b32 s{84+k}, 0")
        e("s_memtime s[64:65]")
        e("s_waitcnt lgkmcnt(0)")
        e("s_mov_b32 s67, s64")
    if steptime: e("s_mov_b32 s57, 0")
    e.label("L_u_loop")
    step(0, "steady")
    step(1, "steady")
    e("s_branch L_u_loop")
    e.label("L_u_done")
    stamp(3)
    if prof:
        for k in range(7): e(f"v_writelane_b32 v254, s{84+k}, {16+k}")
    if steptime:
        e("v_writelane_b32 v254, s57, 23")
        e(f"s_mov_b32 s68, {1 if nact <= 2 else 0}")
        e("v_writelane_b32 v254, s68, 15")
    e.c("---- every wave leaves (m, l) and its unscaled accumulators in LDS")
    e("s_cmp_lg_u32 s3, 0")
    e("s_cbranch_scc1 L_u_noh")
    e(f"v_lshlrev_b32 v{vTINC}, 3, v1")
    e(f"s_add_u32 s58, s28, {WS_H}")
    e("s_addc_u32 s59, s29, 0")
    e(f"global_load_dwordx2 v[{T2}:{T3}], v{vTINC}, s[58:59] sc1")
    e.label("L_u_noh")
    e(f"v_mov_b32 v{T1}, v{vL}")
    e("s_nop 1")
    e(f"v_permlane16_swap_b32 v{T1}, v{vL}")
    e(f"v_add_f32 v{vL}, v{vL}, v{T1}")
    e(f"v_mov_b32 v{T1}, v{vL}")
    e("s_nop 1")
    e(f"v_permlane32_swap_b32 v{T1}, v{vL}")
    e(f"v_add_f32 v{vL}, v{vL}, v{T1}")
    e("v_and_b32 v2, 1, v1")
    e("v_lshlrev_b32 v3, 3, v2")
    e(f"v_add_u32 v3, {LDS_ST}, v3")
    e("s_lshl_b32 s41, s3, 4")
    e("v_add_u32 v3, s41, v3")
    e("v_lshlrev_b32 v2, 10, v2")
    e("v_lshrrev_b32 v23, 4, v1")
    e("v_lshl_add_u32 v2, v23, 7, v2")
    e("v_add_u32 v2, s43, v2")
    e("s_mov_b32 exec_lo, 0x00030003")
    e("s_mov_b32 exec_hi, 0x00030003")
    for j in range(2):
        for r in range(4):
            for ee in range(0, 8, 2):
                o0 = j * 128 + r * 8 + ee
                e(f"ds_write2_b32 v2, v{ACC + (j*8+ee)*4 + r}, v{ACC + (j*8+ee+1)*4 + r} offset0:{o0} offset1:{o0+1}")
    e("s_mov_b64 exec, 3")
    e(f"ds_write_b64 v3, v[{vM}:{vL}]")
    e("s_mov_b64 exec, -1")
    e("s_waitcnt lgkmcnt(0)")
    e("s_barrier")
    stamp(9)
    e("s_cmp_lg_u32 s3, 0")
    e("s_cbranch_scc1 L_u_exit")
    e("v_lshrrev_b32 v2, 5, v1")
    e("v_lshlrev_b32 v2, 3, v2")
    e(f"v_add_u32 v2, {LDS_ST}, v2")
    for w in range(4):
        e(f"ds_read_b64 v[{S0+2*w}:{S0+2*w+1}], v2 offset:{w*16}")
    e("v_lshlrev_b32 v2, 5, v1")
    e("v_add_u32 v3, 0x10000, v2")
    for w in range(4):
        vr = "v2" if w < 2 else "v3"
        e(f"ds_read_b128 v[{ACC+8*w}:{ACC+8*w+3}], {vr} offset:{(w&1)*32768}")
        e(f"ds_read_b128 v[{ACC+8*w+4}:{ACC+8*w+7}], {vr} offset:{(w&1)*32768+16}")
    e("s_waitcnt lgkmcnt(8)")
    e(f"v_max3_f32 v{T0}, v{S0}, v{S0+2}, v{S0+4}")
    e(f"v_max_f32 v{T0}, v{T0}, v{S0+6}")
    for w in range(4):
        e(f"v_sub_f32 v{S0+2*w}, v{S0+2*w}, v{T0}")
    for w in range(4):
        e(f"v_mul_f32 v{S0+2*w}, s44, v{S0+2*w}")
    for w in range(4):
        e(f"v_exp_f32 v{S0+2*w}, v{S0+2*w}")
    e("s_nop 0")
    e(f"v_mul_f32 v{T1}, v{S0}, v{S0+1}")
    e(f"v_fma_f32 v{T1}, v{S0+2}, v{S0+3}, v{T1}")
    e(f"v_fma_f32 v{T1}, v{S0+4}, v{S0+5}, v{T1}")
    e(f"v_fma_f32 v{T1}, v{S0+6}, v{S0+7}, v{T1}")
    e(f"v_rcp_f32 v{T1}, v{T1}")
    e("s_nop 0")
    for w in range(4):
        e(f"v_mul_f32 v{S0+2*w}, v{S0+2*w}, v{T1}")
    e("s_waitcnt lgkmcnt(0)")
    for i in range(8):
        e(f"v_mul_f32 v{ACC+i}, v{ACC+i}, v{S0}")
    for w in range(1, 4):
        for i in range(8):
            e(f"v_fma_f32 v{ACC+i}, v{ACC+8*w+i}, v{S0+2*w}, v{ACC+i}")
    for i in range(4):
        e(f"v_cvt_pk_bf16_f32 v{PP+i}, v{ACC+2*i}, v{ACC+2*i+1}")
    e("v_lshlrev_b32 v2, 4, v1")
    e("s_cmp_lg_u32 s52, 0")
    e("s_cbranch_scc1 L_u_storeA")
    e("s_mov_b32 exec_hi, 0")
    e.label("L_u_storeA")
    e(f"global_store_dwordx4 v2, v[{PP}:{PP+3}], s[50:51] sc1")
    e("s_mov_b64 exec, -1")
    e("s_cmp_lg_u32 s52, 0")
    e("s_cselect_b32 s41, 1, 2")
    e("s_cselect_b32 s47, 1, 3")
    e("s_cselect_b32 s54, 0, 4")
    e("s_lshr_b32 s41, s53, s41")
    e("s_add_u32 s41, s41, s54")
    e("s_lshl_b32 s41, s41, 7")
    e("s_and_b32 s47, s53, s47")
    e("s_lshl_b32 s47, s47, 2")
    e("s_add_u32 s41, s41, s47")
    e("v_lshlrev_b32 v2, 10, v1")
    e("v_add_u32 v2, s41, v2")
    e(f"s_mov_b32 s56, {spin}")
    e.label("L_u_hchk")
    e("s_waitcnt vmcnt(0)")
    e(f"v_cmp_eq_u32 vcc, s30, v{T2}")
    e(f"v_cmp_eq_u32 s[54:55], s31, v{T3}")
    e("s_nop 1")
    e("s_and_b64 s[54:55], s[54:55], vcc")
    e("s_cmp_eq_u64 s[54:55], -1")
    e("s_cbranch_scc1 L_u_sig")
    e(f"global_load_dwordx2 v[{T2}:{T3}], v{vTINC}, s[58:59] sc1")
    e("s_sub_u32 s56, s56, 1")
    e("s_cmp_lg_u32 s56, 0")
    e("s_cbranch_scc1 L_u_hchk")
    e.label("L_u_sig")
    stamp(10)
    e(f"s_add_u32 s58, s28, {WS_REP}")
    e("s_addc_u32 s59, s29, 0")
    e(f"s_mov_b64 exec, {(1 << nrep) - 1}")
    e(f"global_atomic_add v2, v{vONE}, s[58:59] sc1")
    e("s_mov_b64 exec, -1")
    e.label("L_u_exit")
    dstamp(4, 128, 8)
    stamp(4)
    stamp_flush()
    e("s_endpgm")

    WB, QA = 112, 48
    e.label("L_helper0")
    e.c("---- wave 0 of a helper: clear the replica line, then say so")
    e("s_lshl_b32 s47, s2, 7")
    e(f"s_add_u32 s47, s47, {WS_REP}")
    e("s_add_u32 s58, s28, s47")
    e("s_addc_u32 s59, s29, 0")
    e(f"s_cmp_ge_u32 s2, {8 * nrep}")
    e("s_cbranch_scc1 L_h_nozero")
    e("v_and_b32 v6, 31, v1")
    e("v_lshlrev_b32 v6, 2, v6")
    e("v_mov_b32 v7, 0")
    e("global_store_dword v6, v7, s[58:59] sc1")
    e.label("L_h_nozero")
    e("s_waitcnt vmcnt(0)")
    e("s_lshl_b32 s47, s2, 3")
    e(f"s_add_u32 s47, s47, {WS_H}")
    e("v_mov_b32 v6, s47")
    e("s_mov_b64 exec, 1")
    e("global_store_dwordx2 v6, v[38:39], s[28:29] sc1")
    e("s_mov_b64 exec, -1")
    e(f"v_mov_b32 v6, {LDS_RED + 2048}")
    e("ds_write_b64 v6, v[38:39]")
    e("s_waitcnt lgkmcnt(0)")
    if prio: e("s_setprio 0")
    stamp(2)
    e("s_branch L_h_join")
    e.label("L_h_join0")
    if codepf:
        e("s_getpc_b64 s[40:41]")
        e.label("L_pc")
        e(f"s_add_u32 s40, s40, {KN}-L_pc")
        e("s_addc_u32 s41, s41, -1")
        e("s_sub_u32 s42, s3, 1")
        e("s_lshl_b32 s42, s42, 10")
        e("v_lshlrev_b32 v2, 4, v1")
        e("v_add_u32 v2, s42, v2")
        e(f"s_mov_b32 s42, (L_end-{KN})/3072")
        e.label("L_pf")
        e("global_load_dwordx4 v[200:203], v2, s[40:41]")
        e("v_add_u32 v2, 3072, v2")
        e("s_sub_u32 s42, s42, 1")
        e("s_cmp_lg_u32 s42, 0")
        e("s_cbranch_scc1 L_pf")
    if qfirst: e("s_barrier")
    e.label("L_h_join")
    e("s_barrier")
    if womap:
        e("s_lshr_b32 s53, s2, 3")
        e("s_and_b32 s52, s2, 7")
        e("s_lshr_b32 s47, s53, 2")
        e("s_lshl_b32 s54, s52, 1")
        e("s_add_u32 s54, s54, s47")
        e("s_add_u32 s55, s52, 6")
        e("s_cmp_ge_u32 s52, 6")
        e("s_cselect_b32 s54, s55, s54")
        e("s_cselect_b32 s47, s47, 0")
        e("s_cmp_lg_u32 s47, 0")
        e("s_cbranch_scc1 L_h_keeper")
        e("s_cmp_ge_u32 s54, 7")
        e("s_cselect_b32 s40, 1, 0")
        e("s_cselect_b32 s47, 7, 0")
        e("s_sub_u32 s54, s54, s47")
        e("s_lshl_b32 s54, s54, 2")
        e("s_and_b32 s47, s53, 3")
        e("s_add_u32 s41, s54, s47")
    else:
        e("s_lshr_b32 s53, s2, 3")
        e("s_and_b32 s52, s2, 7")
        e("s_mul_i32 s52, s52, 7")
        e("s_add_u32 s52, s52, s53")
        e("s_cmp_eq_u32 s53, 7")
        e("s_cbranch_scc1 L_h_keeper")
        e("s_cmp_ge_u32 s52, 28")
        e("s_cselect_b32 s40, 1, 0")
        e("s_cselect_b32 s47, 28, 0")
        e("s_sub_u32 s41, s52, s47")
    e(f"s_and_b32 s47, s41, {nrep - 1}")
    e("s_lshl_b32 s47, s47, 3")
    e("s_lshl_b32 s58, s40, 2")
    e("s_add_u32 s47, s47, s58")
    e("s_add_u32 s47, s47, s3")
    e("s_lshl_b32 s47, s47, 7")
    e(f"s_add_u32 s47, s47, {WS_REP}")
    e("s_add_u32 s58, s28, s47")
    e("s_addc_u32 s59, s29, 0")
    e("s_cmp_eq_u32 s40, 0")
    e("s_cselect_b32 s36, s12, s22")
    e("s_cselect_b32 s37, s13, s23")
    e("s_and_b32 s37, s37, 0xffff")
    e("s_mov_b32 s38, 3670016")
    e("s_mov_b32 s39, 0x20000")
    e("v_lshrrev_b32 v2, 4, v1")
    e("v_and_b32 v3, 15, v1")
    e("v_lshrrev_b32 v6, 1, v1")
    e("v_mul_u32_u24 v6, 896, v6")
    e("v_and_b32 v7, 1, v1")
    e("v_lshl_add_u32 v6, v7, 4, v6")
    e("s_mul_i32 s42, s3, 917504")
    e("s_lshl_b32 s47, s41, 5")
    e("s_add_u32 s42, s42, s47")
    e("s_lshl_b32 s43, s3, 15")
    def wo_fetch(lo, hi):
        for n in range(lo, hi):
            e(f"s_add_u32 s47, s42, {n*32*896}")
            e(f"s_add_u32 m0, s43, {n*1024}")
            e("s_nop 0")
            e(f"buffer_load_dwordx4 v6, s[36:39], s47 offen {woflags} lds")
        e("s_waitcnt vmcnt(0)")
        stamp(3)
        for ks in range(lo, hi):
            e(f"ds_read_b64_tr_b16 a[{4*ks}:{4*ks+1}], v7 offset:{ks*1024}")
            e(f"ds_read_b64_tr_b16 a[{4*ks+2}:{4*ks+3}], v7 offset:{ks*1024+128}")
            if ks % 4 == 3:
                e("s_waitcnt lgkmcnt(0)")
        e("s_waitcnt lgkmcnt(0)")
    e("v_lshrrev_b32 v7, 2, v3")
    e("v_lshlrev_b32 v7, 5, v7")
    e("v_and_b32 v8, 3, v3")
    e("v_lshl_add_u32 v7, v8, 3, v7")
    e("v_lshl_add_u32 v7, v2, 8, v7")
    e("v_add_u32 v7, s43, v7")
    if not wolate: wo_fetch(0, 32)
    elif woearly: wo_fetch(0, woearly)
    e("v_and_b32 v9, 3, v1")
    e("v_lshlrev_b32 v9, 2, v9")
    e("s_lshl_b32 s47, s40, 16")
    e(f"s_add_u32 s47, s47, {WS_O}")
    e("s_add_u32 s48, s28, s47")
    e("s_addc_u32 s49, s29, 0")
    e("v_and_b32 v10, 7, v1")
    e("v_lshlrev_b32 v10, 13, v10")
    e("v_lshl_add_u32 v10, v2, 4, v10")
    e("s_lshl_b32 s47, s3, 11")
    e("v_add_u32 v10, s47, v10")
    for hh in range(4):
        e("s_cmp_eq_u32 s40, 0")
        e(f"s_cselect_b32 s{72+hh}, {hh >> 1}, {hh}")
    e(f"v_mov_b32 v12, {LDS_RED + 2048}")
    e("ds_read_b64 v[14:15], v12")
    e("s_sub_u32 s47, s58, s28")
    e(f"s_sub_u32 s47, s47, {WS_REP}")
    e("s_lshr_b32 s47, s47, 4")
    e(f"s_add_u32 s47, s47, {WS_H}")
    e("v_mov_b32 v12, s47")
    e(f"s_mov_b32 s56, {spin}")
    e.label("L_h_hw")
    e("global_load_dwordx2 v[16:17], v12, s[28:29] sc1")
    e("s_waitcnt vmcnt(0) lgkmcnt(0)")
    e("v_cmp_eq_u32 vcc, v14, v16")
    e("v_cmp_eq_u32 s[54:55], v15, v17")
    e("s_nop 1")
    e("s_and_b64 s[54:55], s[54:55], vcc")
    e("s_cmp_eq_u64 s[54:55], -1")
    e("s_cbranch_scc1 L_h_hok")
    e("s_sleep 4")
    e("s_sub_u32 s56, s56, 1")
    e("s_cmp_lg_u32 s56, 0")
    e("s_cbranch_scc1 L_h_hw")
    e.label("L_h_hok")
    if wolate:
        e(f"s_mov_b32 s56, {spin}")
        e.label("L_h_first")
        e("global_load_dword v11, v9, s[58:59] sc1")
        e("s_waitcnt vmcnt(0)")
        e(f"v_cmp_le_u32 vcc, {wolate}, v11")
        e("s_cbranch_vccnz L_h_first_ok")
        e(f"s_sleep {sleep_o}")
        e("s_sub_u32 s56, s56, 1")
        e("s_cmp_lg_u32 s56, 0")
        e("s_cbranch_scc1 L_h_first")
        e.label("L_h_first_ok")
        wo_fetch(woearly, 32)
    e("s_mov_b32 s57, 15")
    e(f"s_mov_b32 s56, {spin}")
    e.label("L_h_poll")
    e("global_load_dword v11, v9, s[58:59] sc1")
    e("s_waitcnt vmcnt(0)")
    for hh in range(4):
        e(f"s_bitcmp1_b32 s57, {hh}")
        e(f"s_cbranch_scc0 L_h_skip{hh}")
        e(f"v_readlane_b32 s68, v11, s{72+hh}")
        e("s_nop 3")
        e("s_cmp_lt_u32 s68, 8")
        e(f"s_cbranch_scc1 L_h_skip{hh}")
        e(f"s_bitset0_b32 s57, {hh}")
        e("s_mov_b32 exec_lo, 0x00ff00ff")
        e("s_mov_b32 exec_hi, 0x00ff00ff")
        for ks in range(8 * hh, 8 * hh + 8):
            r = WB + 4 * ks
            e(f"global_load_dwordx4 v[{r}:{r+3}], v10, s[48:49] offset:{ks*64} sc1")
        e("s_mov_b64 exec, -1")
        e.label(f"L_h_skip{hh}")
    e("s_cmp_eq_u32 s57, 0")
    e("s_cbranch_scc1 L_h_ready")
    if sleep_o: e(f"s_sleep {sleep_o}")
    e("s_sub_u32 s56, s56, 1")
    e("s_cmp_lg_u32 s56, 0")
    e("s_cbranch_scc1 L_h_poll")
    e.label("L_h_ready")
    stamp(4)
    e("s_waitcnt vmcnt(0)")
    stamp(11)
    for ks in range(32):
        r = WB + 4 * ks
        a = QA + 4 * (ks % 4)
        c_ = "0" if ks < 4 else f"v[{a}:{a+3}]"
        e(f"v_mfma_f32_16x16x32_bf16 v[{a}:{a+3}], v[{r}:{r+3}], a[{4*ks}:{4*ks+3}], {c_}")
    e("v_lshlrev_b32 v6, 8, v2")
    e("v_lshl_add_u32 v6, v3, 2, v6")
    e("s_lshl_b32 s47, s3, 9")
    e(f"s_add_u32 s47, s47, {LDS_RED}")
    e("v_add_u32 v6, s47, v6")
    e("s_nop 7")
    for i in range(4):
        e(f"v_add_f32 v{QA+i}, v{QA+i}, v{QA+4+i}")
        e(f"v_add_f32 v{QA+8+i}, v{QA+8+i}, v{QA+12+i}")
    for i in range(4):
        e(f"v_add_f32 v{QA+i}, v{QA+i}, v{QA+8+i}")
    e("s_mov_b32 exec_hi, 0")
    for r in range(4):
        e(f"ds_write_b32 v6, v{QA+r} offset:{r*64}")
    e("s_mov_b64 exec, -1")
    e("s_waitcnt lgkmcnt(0)")
    e("s_barrier")
    e("s_cmp_lg_u32 s3, 0")
    e("s_cbranch_scc1 L_h_exit")
    e("v_lshlrev_b32 v6, 3, v1")
    e(f"v_add_u32 v6, {LDS_RED}, v6")
    for w in range(4):
        e(f"ds_read_b64 v[{QA+2*w}:{QA+2*w+1}], v6 offset:{w*512}")
    e("v_lshrrev_b32 v6, 3, v1")
    e("v_mul_u32_u24 v6, 1792, v6")
    e("v_and_b32 v7, 7, v1")
    e("v_lshl_add_u32 v6, v7, 2, v6")
    e("s_mul_i32 s47, s40, 896")
    e("s_lshl_b32 s48, s41, 5")
    e("s_add_u32 s47, s47, s48")
    e("v_add_u32 v6, s47, v6")
    e("s_waitcnt lgkmcnt(0)")
    e(f"v_add_f32 v{QA}, v{QA}, v{QA+2}")
    e(f"v_add_f32 v{QA+1}, v{QA+1}, v{QA+3}")
    e(f"v_add_f32 v{QA+4}, v{QA+4}, v{QA+6}")
    e(f"v_add_f32 v{QA+5}, v{QA+5}, v{QA+7}")
    e(f"v_add_f32 v{QA}, v{QA}, v{QA+4}")
    e(f"v_add_f32 v{QA+1}, v{QA+1}, v{QA+5}")
    e(f"v_cvt_pk_bf16_f32 v{QA}, v{QA}, v{QA+1}")
    e(f"global_store_dword v6, v{QA}, s[24:25] {outflags}")
    e("s_branch L_h_exit")

    e.label("L_h_keeper")
    e.c("---- wg 56, wave 0: once every unit and helper is past its use of the epoch word, advance it")
    e(f"s_cmp_lg_u32 s2, {62 if womap else 56}")
    e("s_cbranch_scc1 L_h_exit")
    e("s_cmp_lg_u32 s3, 0")
    e("s_cbranch_scc1 L_h_exit")
    e("v_min_u32 v2, 23, v1")
    e("v_cmp_gt_u32 vcc, 8, v2")
    e("v_lshrrev_b32 v3, 1, v2")
    e("v_lshlrev_b32 v3, 7, v3")
    e("v_and_b32 v4, 1, v2")
    e("v_lshl_add_u32 v3, v4, 2, v3")
    e("v_subrev_u32 v4, 8, v2")
    e("v_lshrrev_b32 v5, 2, v4")
    e("v_add_u32 v5, 4, v5")
    e("v_lshlrev_b32 v5, 7, v5")
    e("v_and_b32 v4, 3, v4")
    e("v_lshl_add_u32 v4, v4, 2, v5")
    e("v_cndmask_b32 v3, v4, v3, vcc")
    e(f"v_add_u32 v3, {WS_REP}, v3")
    e("v_lshlrev_b32 v4, 3, v1")
    e(f"v_add_u32 v4, {WS_H}, v4")
    e(f"s_mov_b32 s56, {spin}")
    e.label("L_k_h")
    e("global_load_dwordx2 v[6:7], v4, s[28:29] sc1")
    e("s_waitcnt vmcnt(0)")
    e("v_cmp_eq_u32 s[54:55], s30, v6")
    e("v_cmp_eq_u32 s[68:69], s31, v7")
    e("s_nop 1")
    e("s_and_b64 s[54:55], s[54:55], s[68:69]")
    e("s_cmp_eq_u64 s[54:55], -1")
    e("s_cbranch_scc1 L_k_h2")
    e("s_sleep 8")
    e("s_sub_u32 s56, s56, 1")
    e("s_cmp_lg_u32 s56, 0")
    e("s_cbranch_scc1 L_k_h")
    e.label("L_k_h2")
    e(f"s_mov_b32 s56, {spin}")
    e.label("L_k_poll")
    e("global_load_dword v5, v3, s[28:29] sc1")
    e("s_waitcnt vmcnt(0)")
    e("v_cmp_gt_u32 vcc, 8, v5")
    e("s_cbranch_vccz L_k_done")
    e("s_sleep 8")
    e("s_sub_u32 s56, s56, 1")
    e("s_cmp_lg_u32 s56, 0")
    e("s_cbranch_scc1 L_k_poll")
    e.label("L_k_done")
    e("v_mov_b32 v2, 0")
    e("v_mov_b32 v6, s30")
    e("v_mov_b32 v7, s31")
    e("s_mov_b64 exec, 1")
    e(f"global_store_dwordx2 v2, v[6:7], s[28:29] offset:{WS_EPOCH} sc1")
    e("s_mov_b64 exec, -1")
    e.label("L_h_exit")
    dstamp(1, 0)
    dstamp(2, 30)
    dstamp(3, 17)
    stamp(5)
    stamp_flush()
    e.label("L_end")
    e("s_endpgm")
    e.l.append('.section .rodata,"a"')
    e.l.append(".p2align 6")
    e.l.append(f".amdhsa_kernel {KN}")
    e.l.append("  .amdhsa_next_free_vgpr 384")
    e.l.append("  .amdhsa_next_free_sgpr 96")
    e.l.append("  .amdhsa_accum_offset 256")
    e.l.append("  .amdhsa_group_segment_fixed_size 0")
    e.l.append("  .amdhsa_kernarg_size 104")
    e.l.append("  .amdhsa_user_sgpr_count 2")
    e.l.append("  .amdhsa_user_sgpr_kernarg_segment_ptr 1")
    e.l.append("  .amdhsa_system_sgpr_workgroup_id_x 1")
    e.l.append(".end_amdhsa_kernel")
    return "\n".join(e.l) + "\n"

if __name__ == "__main__":
    kw = dict(a.split("=") for a in sys.argv[2:])
    for k in kw:
        try: kw[k] = int(kw[k])
        except: kw[k] = kw[k].replace("+", " ")
    for k in list(kw):
        if kw[k] == "none": kw[k] = ""
    open(sys.argv[1], "w").write(gen(**kw))
```

```python
import sys
KN = "concat_heads__gqa_block_cached__mha_block_cached__decode_kernel"

HEADER = """; Fused decode attention (two problems: GQA 'A' and MHA 'B') for gfx950, one launch.
;                      16-byte {4 x bf16, 64-bit epoch} granules that the consumers validate by their tag
"""

class G:
    def __init__(self):
        self.l = []
    def __call__(self, s):
        self.l.append("  " + s)
    def label(self, s):
        self.l.append(s + ":")
    def c(self, s):
        self.l.append("  ; " + s)

def gen(stamps=0, spin=1 << 18, kflags="nt", vflags="nt", wqflags="nt", woflags="nt", sleep_q=1, sleep_o=4, mode="alt",
        prof=0, steptime=0, nact=4, prio=1, pace=0, qfirst=1, win=0, dbg=0, outflags="", split=0, nrep=1, qloop=1, earlyv=124, puball=0, womap=1, umap="lin", codepf=0, wolate=1, woearly=22, rnds=1, jit=0, clk=0, flg=1):
    e = G()
    LDS_Q, LDS_TK, LDS_ST, LDS_QT, LDS_RED = 131072, 132096, 132128, 133120, 135168
    LDS_BYTES = 139264
    WS_EPOCH, WS_H, WS_REP, WS_QG, WS_O, WS_STAMP = 0, 0x1000, 0x2000, 0x10000, 0x60000, 0x20000000
    WS_PROG = 0x4000
    WS_FL = 0x3000
    vPA, vPV = 244, 245
    NT = 128
    SCALE = 0x3DB8AA3B

    def stamp(idx):
        if not stamps: return
        e("s_memrealtime s[62:63]")
        e("s_waitcnt lgkmcnt(0)")
        e(f"v_writelane_b32 v254, s62, {idx}")
    def stamp_flush():
        if not stamps: return
        e("s_lshl_b32 s60, s2, 10")
        e("s_lshl_b32 s61, s3, 8")
        e("s_add_u32 s60, s60, s61")
        e(f"s_add_u32 s62, s28, {WS_STAMP}")
        e("s_addc_u32 s63, s29, 0")
        e("s_add_u32 s62, s62, s60")
        e("s_addc_u32 s63, s63, 0")
        e("v_mbcnt_lo_u32_b32 v253, -1, 0")
        e("v_mbcnt_hi_u32_b32 v253, -1, v253")
        e("v_lshlrev_b32 v253, 2, v253")
        e("global_store_dword v253, v254, s[62:63]")
    dcount = [0]
    def dstamp(word, wg, nwg=1):
        if not dbg: return
        dcount[0] += 1
        u = dcount[0]
        e("s_cmp_lg_u32 s3, 0")
        e(f"s_cbranch_scc1 L_ds_{u}")
        e(f"s_sub_u32 s61, s2, {wg}")
        e(f"s_cmp_ge_u32 s61, {nwg}")
        e(f"s_cbranch_scc1 L_ds_{u}")
        e("s_memrealtime s[62:63]")
        e(f"s_add_u32 s61, s61, {word}")
        e("s_lshl_b32 s61, s61, 2")
        e("s_waitcnt lgkmcnt(0)")
        e("v_mov_b32 v252, s62")
        e("v_mov_b32 v251, s61")
        e("s_mov_b64 exec, 1")
        e("global_store_dword v251, v252, s[26:27]")
        e("s_mov_b64 exec, -1")
        e.label(f"L_ds_{u}")
    def pf(k):
        if not prof: return
        e("s_memtime s[64:65]")
        e("s_waitcnt lgkmcnt(0)")
        e("s_sub_u32 s66, s64, s67")
        e(f"s_add_u32 s{84+k}, s{84+k}, s66")
        e("s_mov_b32 s67, s64")

    e.l.append(HEADER.rstrip("\n"))
    e.l.append(f"; @launch grid=(256,1,1) block=(256,1,1) lds={LDS_BYTES}")
    e.l.append('.amdgcn_target "amdgcn-amd-amdhsa--gfx950"')
    e.l.append(".text")
    e.l.append(f".globl {KN}")
    e.l.append(".p2align 8")
    e.l.append(f".type {KN},@function")
    e.label(KN)
    e("s_cmp_ge_u32 s2, 256")
    e("s_cbranch_scc1 L_end")
    e("s_load_dwordx16 s[4:19], s[0:1], 0")
    e("s_load_dwordx8 s[20:27], s[0:1], 64")
    e("s_load_dwordx2 s[28:29], s[0:1], 96")
    if stamps:
        e("v_mov_b32 v254, 0")
    e("v_lshrrev_b32 v2, 6, v0")
    e("v_and_b32 v1, 63, v0")
    e("v_readfirstlane_b32 s3, v2")
    stamp(0)
    e("s_waitcnt lgkmcnt(0)")
    dstamp(0, 0)
    dstamp(13, 255)
    if jit == 2:
        e("s_and_b32 s40, s2, 15")
        e("s_cmp_lg_u32 s40, 5")
        e("s_cbranch_scc1 L_jit2")
        for _ in range(10): e("s_sleep 127")
        e.label("L_jit2")
    if jit == 3:
        e("s_add_u32 s40, s2, s3")
        e("s_and_b32 s40, s40, 3")
        e("s_cmp_lg_u32 s40, 1")
        e("s_cbranch_scc1 L_jit3")
        for _ in range(3): e("s_sleep 127")
        e.label("L_jit3")
    if jit == 4:
        e("s_cmp_lt_u32 s2, 60")
        e("s_cbranch_scc1 L_jit4")
        e("s_cmp_ge_u32 s2, 64")
        e("s_cbranch_scc1 L_jit4")
        for _ in range(14): e("s_sleep 127")
        e.label("L_jit4")
    if clk:
        e("s_memtime s[84:85]")
        e("s_memrealtime s[86:87]")
        e("s_waitcnt lgkmcnt(0)")
    e("s_cmp_eq_u32 s3, 0")
    e("s_cbranch_scc1 L_qslice")
    e("s_cmp_lt_u32 s2, 64")
    e("s_cbranch_scc1 L_h_join0")
    e("s_branch L_unit_setup")

    XF, BQ = 48, 112
    T0, T1, T2, T3 = 240, 241, 242, 243
    e.label("L_qslice")
    if prio: e("s_setprio 3")
    e("s_and_b32 s40, s2, 7")
    e("s_lshl_b32 s40, s40, 5")
    e("s_lshr_b32 s41, s2, 3")
    e("s_add_u32 s40, s40, s41")
    e("s_lshr_b32 s80, s40, 7")
    e("s_and_b32 s81, s40, 127")
    e("s_cmp_eq_u32 s80, 0")
    e("s_cselect_b32 s72, s4, s14")
    e("s_cselect_b32 s73, s5, s15")
    e("s_cselect_b32 s76, s10, s20")
    e("s_cselect_b32 s77, s11, s21")
    e("s_and_b32 s73, s73, 0xffff")
    e("s_and_b32 s77, s77, 0xffff")
    e("s_mov_b32 s74, 7168")
    e("s_mov_b32 s75, 0x20000")
    e("s_mov_b32 s78, 3670016")
    e("s_mov_b32 s79, 0x20000")
    e("v_lshrrev_b32 v2, 2, v1")
    e("v_lshlrev_b32 v2, 13, v2")
    e("v_and_b32 v3, 3, v1")
    e("v_lshl_add_u32 v2, v3, 4, v2")
    e("s_lshl_b32 s41, s81, 6")
    if qloop:
        e("s_mov_b32 m0, 0")
        e("s_mov_b32 s42, 28")
        e.label("L_qdma")
        e(f"buffer_load_dwordx4 v2, s[76:79], s41 offen {wqflags} lds")
        e("s_add_u32 s41, s41, 131072")
        e("s_add_u32 m0, m0, 1024")
        e("s_sub_u32 s42, s42, 1")
        e("s_cmp_lg_u32 s42, 0")
        e("s_cbranch_scc1 L_qdma")
    else:
        for n in range(28):
            e(f"s_add_u32 s42, s41, {n*131072}")
            e(f"s_mov_b32 m0, {n*1024}")
            e("s_nop 0")
            e(f"buffer_load_dwordx4 v2, s[76:79], s42 offen {wqflags} lds")
    e("v_and_b32 v4, 7, v1")
    e("v_mul_u32_u24 v4, 896, v4")
    e("v_lshrrev_b32 v5, 4, v1")
    e("v_lshl_add_u32 v4, v5, 4, v4")
    for ks in range(14):
        e(f"buffer_load_dwordx4 v[{XF+4*ks}:{XF+4*ks+3}], v4, s[72:75], 0 offen offset:{ks*64}")
    e("v_mov_b32 v6, 0")
    e(f"global_load_dwordx2 v[{T0}:{T1}], v6, s[28:29] offset:{WS_EPOCH} sc1")
    if qfirst: e("s_barrier")
    e("v_and_b32 v3, 15, v1")
    e("v_lshrrev_b32 v6, 2, v3")
    e("v_lshlrev_b32 v6, 6, v6")
    e("v_and_b32 v7, 3, v3")
    e("v_lshl_add_u32 v6, v7, 3, v6")
    e("v_lshl_add_u32 v6, v5, 9, v6")
    e("s_waitcnt vmcnt(0)")
    stamp(6)
    e(f"v_readfirstlane_b32 s30, v{T0}")
    e(f"v_readfirstlane_b32 s31, v{T1}")
    def trread(ks):
        for ct in range(2):
            r = BQ + (ks * 2 + ct) * 4
            e(f"ds_read_b64_tr_b16 v[{r}:{r+1}], v6 offset:{ks*2048 + ct*32}")
            e(f"ds_read_b64_tr_b16 v[{r+2}:{r+3}], v6 offset:{ks*2048 + ct*32 + 256}")
    def qmf(ks):
        for ct in range(2):
            r = BQ + (ks * 2 + ct) * 4
            d = 24 + 4 * ct
            c_ = "0" if ks == 0 else f"v[{d}:{d+3}]"
            e(f"v_mfma_f32_16x16x32_bf16 v[{d}:{d+3}], v[{XF+4*ks}:{XF+4*ks+3}], v[{r}:{r+3}], {c_}")
    for ks in range(3): trread(ks)
    e("s_add_u32 s30, s30, 1")
    e("s_addc_u32 s31, s31, 0")
    for ks in range(14):
        left = min(14, ks + 3) - (ks + 1)
        e(f"s_waitcnt lgkmcnt({4*left})")
        qmf(ks)
        if ks + 3 < 14: trread(ks + 3)
    e("v_lshlrev_b32 v6, 9, v5")
    e("v_lshl_add_u32 v6, v3, 2, v6")
    e(f"v_add_u32 v6, {LDS_QT}, v6")
    e("s_nop 7")
    e("s_mov_b32 exec_hi, 0")
    for ct in range(2):
        for r in range(4):
            e(f"ds_write_b32 v6, v{24+4*ct+r} offset:{r*128 + ct*64}")
    e("s_mov_b64 exec, -1")
    e("v_lshlrev_b32 v6, 4, v1")
    e(f"v_add_u32 v6, {LDS_QT}, v6")
    e("s_waitcnt lgkmcnt(0)")
    e("ds_read_b128 v[32:35], v6")
    e("v_lshrrev_b32 v6, 3, v1")
    e("v_lshlrev_b32 v6, 14, v6")
    e("v_and_b32 v7, 7, v1")
    e("v_lshl_add_u32 v6, v7, 4, v6")
    e("s_lshl_b32 s41, s80, 17")
    e("s_lshl_b32 s42, s81, 7")
    e("s_add_u32 s41, s41, s42")
    e(f"s_add_u32 s41, s41, {WS_QG}")
    e("s_add_u32 s82, s28, s41")
    e("s_addc_u32 s83, s29, 0")
    e("v_mov_b32 v38, s30")
    e("v_mov_b32 v39, s31")
    e("s_waitcnt lgkmcnt(0)")
    e("v_cvt_pk_bf16_f32 v36, v32, v33")
    e("v_cvt_pk_bf16_f32 v37, v34, v35")
    e("global_store_dwordx4 v6, v[36:39], s[82:83] sc1")
    stamp(7)
    e("s_cmp_lt_u32 s2, 64")
    e("s_cbranch_scc1 L_helper0")

    KV = 4
    VV = 12
    KA = 13
    vM, vL, vNMC, vTK, vONE, vTINC = 18, 19, 20, 21, 22, 17
    S0, PP, TT, ACC, VB = 24, 32, 36, 48, (112, 176)
    aK, aQ = 0, 64
    def unit_index():
        e("s_sub_u32 s40, s2, 64")
        if umap == "xcd":
            e("s_and_b32 s41, s40, 7")
            e("s_mul_i32 s41, s41, 24")
            e("s_lshr_b32 s40, s40, 3")
            e("s_add_u32 s40, s40, s41")
        elif umap == "swz":
            e("s_lshr_b32 s41, s40, 3")
            e("s_and_b32 s41, s41, 7")
            e("s_xor_b32 s40, s40, s41")
        elif umap == "mix":
            e("s_mul_i32 s40, s40, 37")
            e("s_mul_hi_u32 s41, s40, 0x1555556")
            e("s_mul_i32 s41, s41, 192")
            e("s_sub_u32 s40, s40, s41")
    e.label("L_unit_setup")
    unit_index()
    e("s_cmp_lt_u32 s40, 64")
    e("s_cselect_b32 s52, 1, 0")
    e("s_cselect_b32 s32, s6, s16")
    e("s_cselect_b32 s33, s7, s17")
    e("s_cselect_b32 s36, s8, s18")
    e("s_cselect_b32 s37, s9, s19")
    e("s_cselect_b32 s41, 0, 64")
    e("s_sub_u32 s40, s40, s41")
    e("s_lshl_b32 s41, s40, 21")
    e("s_add_u32 s32, s32, s41")
    e("s_addc_u32 s33, s33, 0")
    e("s_add_u32 s36, s36, s41")
    e("s_addc_u32 s37, s37, 0")
    e("s_and_b32 s33, s33, 0xffff")
    e("s_and_b32 s37, s37, 0xffff")
    e("s_mov_b32 s34, 0x200000")
    e("s_mov_b32 s35, 0x20000")
    e("s_mov_b32 s38, 0x200000")
    e("s_mov_b32 s39, 0x20000")
    e("s_lshl_b32 s43, s3, 15")
    e("v_lshrrev_b32 v2, 5, v1")
    e("v_and_b32 v3, 31, v1")
    e("v_lshlrev_b32 v23, 2, v2")
    e("v_xor_b32 v3, v3, v23")
    e("v_lshlrev_b32 v3, 4, v3")
    e("v_lshl_add_u32 v3, v2, 9, v3")
    for n in range(8):
        cst = (8 * (n & 1) + ((n >> 1) & 3)) * 16
        e(f"v_xor_b32 v{KV+n}, {cst}, v3")
    e("v_lshrrev_b32 v2, 4, v1")
    e("v_and_b32 v3, 15, v1")
    e("v_lshlrev_b32 v23, 4, v3")
    e(f"v_lshl_add_u32 v{VV}, v2, 9, v23")

    def issueK(slot, soff, lo=0, hi=16):
        for n in range(lo, hi):
            if n % 4 == 0:
                e(f"s_add_u32 s42, {soff}, {(n//4)*4096}")
                e(f"s_add_u32 m0, s43, {slot*16384 + (n//4)*4096}")
                e("s_nop 0")
            e(f"buffer_load_dwordx4 v{KV + (n & 7)}, s[32:35], s42 offen offset:{(n%4)*1024} {kflags} lds")
    def issueV(slot, soff, lo=0, hi=8):
        for i in range(lo, hi):
            if i % 2 == 0:
                e(f"s_add_u32 s42, {soff}, {(i//2)*4096}")
            for j in range(2):
                r = VB[slot] + (i * 2 + j) * 4
                e(f"buffer_load_dwordx4 v[{r}:{r+3}], v{VV}, s[36:39], s42 offen offset:{(i%2)*2048 + j*256} {vflags}")
    def prefetch():
        e("s_lshl_b32 s40, s3, 14")
        e("s_add_u32 s47, s40, 0x10000")
        issueK(0, "s40")
        if pace: e("s_waitcnt vmcnt(8)")
        issueV(0, "s40")
        if pace: e("s_waitcnt vmcnt(8)")
        issueK(1, "s47")
        if pace: e("s_waitcnt vmcnt(8)")
        issueV(1, "s47")

    e("s_cmp_eq_u32 s3, 0")
    e("s_cbranch_scc1 L_u_rest")
    if qfirst: e("s_barrier")
    prefetch()
    stamp(1)
    e.label("L_u_rest")
    unit_index()
    e("s_cmp_lg_u32 s52, 0")
    e("s_cselect_b32 s41, 0, 64")
    e("s_sub_u32 s40, s40, s41")
    e("s_cmp_lg_u32 s52, 0")
    e("s_cselect_b32 s41, 3, 4")
    e("s_cselect_b32 s47, 7, 15")
    e("s_cselect_b32 s54, 11, 10")
    e("s_cselect_b32 s55, 0, 0x20000")
    e("s_cselect_b32 s68, 10, 9")
    e("s_cselect_b32 s69, 0, 0x10000")
    e("s_lshr_b32 s42, s40, s41")
    e("s_and_b32 s53, s40, s47")
    e("s_lshl_b32 s41, s53, s54")
    e("s_lshl_b32 s47, s42, 14")
    e("s_add_u32 s41, s41, s47")
    e("s_add_u32 s41, s41, s55")
    e(f"s_add_u32 s41, s41, {WS_QG}")
    e("s_add_u32 s48, s28, s41")
    e("s_addc_u32 s49, s29, 0")
    e("s_lshl_b32 s41, s53, s68")
    e("s_lshl_b32 s47, s42, 13")
    e("s_add_u32 s41, s41, s47")
    e("s_add_u32 s41, s41, s69")
    e(f"s_add_u32 s41, s41, {WS_O}")
    e("s_add_u32 s50, s28, s41")
    e("s_addc_u32 s51, s29, 0")
    e(f"s_mov_b32 s44, {SCALE}")
    e("s_mov_b32 s45, 0x05040100")
    e("s_mov_b32 s46, 0x07060302")
    e("v_and_b32 v23, 3, v3")
    e("v_lshlrev_b32 v23, 2, v23")
    e(f"v_lshrrev_b32 v{T2}, 2, v3")
    e(f"v_add_u32 v23, v23, v{T2}")
    e("v_lshlrev_b32 v23, 9, v23")
    e("v_add_u32 v23, s43, v23")
    for jj in range(4):
        e(f"v_add_u32 v{T2}, {4*jj}, v2")
        e(f"v_xor_b32 v{T2}, v{T2}, v3")
        e(f"v_lshl_add_u32 v{KA+jj}, v{T2}, 4, v23")
    e(f"v_mov_b32 v{vTK}, {LDS_TK}")
    e(f"v_mov_b32 v{vONE}, 1")
    e("v_cmp_eq_u32 vcc, 0, v1")
    e(f"v_mov_b32 v{vM}, 0xff800000")
    e(f"v_mov_b32 v{vL}, 0")
    e(f"v_cndmask_b32 v{vTINC}, 0, 1, vcc")
    e(f"v_mov_b32 v{vNMC}, 0")
    for i in range(64):
        e(f"v_mov_b32 v{ACC+i}, 0")
    e("s_cmp_lg_u32 s3, 0")
    e("s_cbranch_scc1 L_u_bar")
    e.c("---- wave 0: wait for this unit's q granules")
    e("v_lshlrev_b32 v2, 4, v1")
    e("s_cmp_lg_u32 s52, 0")
    e("s_cselect_b32 s41, 1024, 0")
    e("v_add_u32 v3, s41, v2")
    e(f"s_mov_b32 s56, {spin}")
    e.label("L_u_poll")
    e(f"global_load_dwordx4 v[24:27], v2, s[48:49] sc1")
    e(f"global_load_dwordx4 v[28:31], v3, s[48:49] sc1")
    e("s_waitcnt vmcnt(0)")
    e("v_cmp_eq_u32 vcc, s30, v26")
    e("v_cmp_eq_u32 s[54:55], s31, v27")
    e("v_cmp_eq_u32 s[68:69], s30, v30")
    e("v_cmp_eq_u32 s[70:71], s31, v31")
    e("s_nop 1")
    e("s_and_b64 s[54:55], s[54:55], vcc")
    e("s_and_b64 s[68:69], s[68:69], s[70:71]")
    e("s_and_b64 s[54:55], s[54:55], s[68:69]")
    e("s_cmp_eq_u64 s[54:55], -1")
    e("s_cbranch_scc1 L_u_qready")
    if sleep_q: e(f"s_sleep {sleep_q}")
    e("s_sub_u32 s56, s56, 1")
    e("s_cmp_lg_u32 s56, 0")
    e("s_cbranch_scc1 L_u_poll")
    e.label("L_u_qready")
    e("v_lshlrev_b32 v2, 3, v1")
    e(f"v_add_u32 v2, {LDS_Q}, v2")
    e("ds_write_b64 v2, v[24:25]")
    e("ds_write_b64 v2, v[28:29] offset:512")
    e("v_mov_b32 v2, 8")
    e("v_mov_b32 v3, s30")
    e(f"ds_write_b64 v{vTK}, v[2:3]")
    stamp(8)
    if prio: e("s_setprio 0")
    e("s_waitcnt lgkmcnt(0)")
    e("s_barrier")
    prefetch()
    stamp(1)
    e("s_branch L_u_go")
    e.label("L_u_bar")
    e("s_barrier")
    e.label("L_u_go")
    dstamp(12, 64)
    stamp(2)
    e("v_and_b32 v2, 1, v1")
    e("v_lshlrev_b32 v2, 9, v2")
    e("v_lshrrev_b32 v3, 4, v1")
    e("v_lshl_add_u32 v2, v3, 4, v2")
    e(f"v_add_u32 v2, {LDS_Q}, v2")
    for j in range(8):
        e(f"ds_read_b128 a[{aQ+4*j}:{aQ+4*j+3}], v2 offset:{j*64}")
    if win:
        e(f"ds_read_b32 v{vPV}, v{vTK} offset:4")
        e(f"s_add_u32 s92, s28, {WS_PROG}")
        e("s_addc_u32 s93, s29, 0")
        e("s_sub_u32 s94, s2, 64")
        e(f"v_and_b32 v{vPA}, 7, v1")
        e(f"v_lshlrev_b32 v{vPA}, 2, v{vPA}")
        e("s_lshl_b32 s41, s3, 7")
        e(f"v_add_u32 v{vPA}, s41, v{vPA}")
        e("s_waitcnt lgkmcnt(0)")
        e(f"v_readfirstlane_b32 s95, v{vPV}")
        e("s_nop 3")
        e("s_lshl_b32 s95, s95, 8")

    def prog_min():
        e(f"v_xor_b32 v{vPV}, s95, v{vPV}")
        e(f"v_cmp_gt_u32 vcc, 256, v{vPV}")
        e("s_nop 1")
        e(f"v_cndmask_b32 v{vPV}, 8, v{vPV}, vcc")
        e("s_nop 1")
        e(f"v_min_u32_dpp v{vPV}, v{vPV}, v{vPV} quad_perm:[1,0,3,2] row_mask:0xf bank_mask:0xf")
        e("s_nop 1")
        e(f"v_min_u32_dpp v{vPV}, v{vPV}, v{vPV} quad_perm:[2,3,0,1] row_mask:0xf bank_mask:0xf")
        e("s_nop 1")
        e(f"v_min_u32_dpp v{vPV}, v{vPV}, v{vPV} row_half_mirror row_mask:0xf bank_mask:0xf")
        e("s_nop 0")
        e(f"v_readfirstlane_b32 s68, v{vPV}")
        e("s_nop 3")
        e(f"s_add_u32 s68, s68, {win}")
    def prog_gate(u):
        e(f"s_cmp_ge_u32 s41, {NT - 8}")
        e(f"s_cbranch_scc1 L_go_{u}")
        prog_min()
        e("s_cmp_le_u32 s41, s68")
        e(f"s_cbranch_scc1 L_go_{u}")
        e(f"s_mov_b32 s56, {spin}")
        e.label(f"L_gate_{u}")
        e(f"global_load_dword v{vPV}, v{vPA}, s[92:93] sc1")
        e("s_waitcnt vmcnt(0)")
        prog_min()
        e("s_cmp_le_u32 s41, s68")
        e(f"s_cbranch_scc1 L_go_{u}")
        e("s_sleep 2")
        e("s_sub_u32 s56, s56, 1")
        e("s_cmp_lg_u32 s56, 0")
        e(f"s_cbranch_scc1 L_gate_{u}")
        e.label(f"L_go_{u}")
    def prog_publish(u):
        e("s_cmp_ge_u32 s94, 8")
        e(f"s_cbranch_scc1 L_nopub_{u}")
        if not puball:
            e("s_cmp_lg_u32 s3, 0")
            e(f"s_cbranch_scc1 L_nopub_{u}")
        e("s_min_u32 s68, s41, 255")
        e("s_or_b32 s68, s68, s95")
        e("s_lshl_b32 s54, s94, 2")
        e(f"v_lshlrev_b32 v{T2}, 7, v1")
        e(f"v_add_u32 v{T2}, s54, v{T2}")
        e(f"v_mov_b32 v{T3}, s68")
        e("s_mov_b64 exec, 15")
        e(f"global_store_dword v{T2}, v{T3}, s[92:93] sc1")
        e("s_mov_b64 exec, -1")
        e.label(f"L_nopub_{u}")

    uid = [0]
    def step(slot, kind):
        uid[0] += 1
        u = uid[0]
        steady = kind == "steady"
        if steady and steptime:
            e("s_memrealtime s[62:63]")
            e(f"s_lshr_b32 s68, s57, {1 if nact <= 2 else 0}")
            e("s_min_u32 s68, s68, 39")
            e("s_add_u32 s68, s68, 24")
            e("s_mov_b32 m0, s68")
            e("s_waitcnt lgkmcnt(0)")
            e("v_writelane_b32 v254, s62, m0")
            e("s_add_u32 s57, s57, 1")
        if steady: pf(6)
        if mode == "alt":
            wk = {'first0':48, 'first1':16, 'steady':0}[kind]
            wv = {'first0':32, 'first1':0, 'steady':0}[kind]
        else:
            wk = {'first0':48, 'first1':16, 'steady':16}[kind]
            wv = {'first0':32, 'first1':16, 'steady':16}[kind]
        tick = kind != "first0"
        if tick:
            if nact < 4 and kind == "first1":
                e(f"s_cmp_ge_u32 s3, {nact}")
                e(f"s_cbranch_scc1 L_notick_{u}")
            e(f"ds_add_rtn_u32 v{T3}, v{vTK}, v{vTINC}")
            if nact < 4 and kind == "first1":
                e.label(f"L_notick_{u}")
        if False:
            pass
        elif earlyv and steady and mode == "alt" and not split:
            e("s_cmp_eq_u32 s71, 0")
            e(f"s_cbranch_scc1 L_ev0_{u}")
            e("s_waitcnt vmcnt(16)")
            e(f"s_branch L_ev1_{u}")
            e.label(f"L_ev0_{u}")
            e("s_waitcnt vmcnt(0)")
            if win: e(f"global_load_dword v{vPV}, v{vPA}, s[92:93] sc1")
            issueV(slot, "s40")
            e.label(f"L_ev1_{u}")
        else:
            e(f"s_waitcnt vmcnt({wk})")
        if steady: pf(0)
        if mode == "alt" and steady and not (earlyv and not split):
            if split:
                if split in (1, 3):
                    issueK(slot, "s40", 8, 16)
                    e("s_waitcnt vmcnt(0)")
                if split in (1, 2): issueV(slot, "s40", 0, 4)
                else: issueV(slot, "s40")
            else:
                issueV(slot, "s40")
        if steady: pf(1)
        so = slot * 16384
        def rd(j):
            for t in range(2):
                r = aK + (j * 2 + t) * 4
                e(f"ds_read_b128 a[{r}:{r+3}], v{KA + (j & 3)} offset:{so + t*8192 + (j>>2)*256}")
        def mf(j):
            for t in range(2):
                r = aK + (j * 2 + t) * 4
                c_ = "0" if j == 0 else f"v[{S0+4*t}:{S0+4*t+3}]"
                e(f"v_mfma_f32_16x16x32_bf16 v[{S0+4*t}:{S0+4*t+3}], a[{r}:{r+3}], a[{aQ+4*j}:{aQ+4*j+3}], {c_}")
        for j in range(6): rd(j)
        e("s_waitcnt lgkmcnt(8)")
        mf(0); mf(1)
        rd(6); rd(7)
        e("s_waitcnt lgkmcnt(8)")
        mf(2); mf(3)
        e("s_waitcnt lgkmcnt(4)")
        mf(4); mf(5)
        e("s_waitcnt lgkmcnt(0)")
        mf(6); mf(7)
        if tick:
            e(f"v_readfirstlane_b32 s41, v{T3}")
            if nact < 4 and kind == "first1":
                e(f"s_cmp_ge_u32 s3, {nact}")
                e(f"s_cselect_b32 s41, {NT}, s41")

        if mode == "mid" and tick:
            e(f"s_cmp_ge_u32 s41, {NT}")
            e(f"s_cbranch_scc1 L_last_{u}")
            e("s_lshl_b32 s40, s41, 14")
            issueK(slot ^ 1, "s40")
        def softmax_pv(tag, wv_, after_v, after_pv):
            e("s_nop 7")
            if rnds:
                for i in range(4):
                    e(f"v_cvt_pk_bf16_f32 v{PP+i}, v{S0+2*i}, v{S0+2*i+1}")
                for i in range(4):
                    e(f"v_lshlrev_b32 v{S0+2*i}, 16, v{PP+i}")
                    e(f"v_and_b32 v{S0+2*i+1}, 0xffff0000, v{PP+i}")
            e(f"v_max3_f32 v{T0}, v{S0}, v{S0+1}, v{S0+2}")
            e(f"v_max3_f32 v{T1}, v{S0+3}, v{S0+4}, v{S0+5}")
            e(f"v_max3_f32 v{T0}, v{S0+6}, v{S0+7}, v{T0}")
            e(f"v_max_f32 v{T0}, v{T0}, v{T1}")
            e(f"v_mov_b32 v{T1}, v{T0}")
            e("s_nop 1")
            e(f"v_permlane16_swap_b32 v{T1}, v{T0}")
            e(f"v_max_f32 v{T0}, v{T0}, v{T1}")
            e(f"v_mov_b32 v{T1}, v{T0}")
            e("s_nop 1")
            e(f"v_permlane32_swap_b32 v{T1}, v{T0}")
            e(f"v_max3_f32 v{T0}, v{T0}, v{T1}, v{vM}")
            e(f"v_cmp_gt_f32 vcc, v{T0}, v{vM}")
            e(f"s_cbranch_vccz L_norescale_{tag}")
            e(f"v_sub_f32 v{T1}, v{vM}, v{T0}")
            e(f"v_mul_f32 v{T1}, s44, v{T1}")
            e(f"v_exp_f32 v{T1}, v{T1}")
            e(f"v_mov_b32 v{vM}, v{T0}")
            e(f"v_mul_f32 v{vNMC}, s44, v{T0}")
            e(f"v_mul_f32 v{vL}, v{vL}, v{T1}")
            e(f"v_sub_f32 v{vNMC}, 0, v{vNMC}")
            for i in range(64):
                e(f"v_mul_f32 v{ACC+i}, v{ACC+i}, v{T1}")
            e.label(f"L_norescale_{tag}")
            for i in range(8):
                e(f"v_fma_f32 v{S0+i}, v{S0+i}, s44, v{vNMC}")
            for i in range(8):
                e(f"v_exp_f32 v{S0+i}, v{S0+i}")
            e("s_nop 0")
            e(f"v_add_f32 v{T0}, v{S0}, v{S0+1}")
            e(f"v_add_f32 v{T1}, v{S0+2}, v{S0+3}")
            e(f"v_add_f32 v{T2}, v{S0+4}, v{S0+5}")
            e(f"v_cvt_pk_bf16_f32 v{PP}, v{S0}, v{S0+1}")
            e(f"v_add_f32 v{T0}, v{T0}, v{T1}")
            e(f"v_add_f32 v{T1}, v{S0+6}, v{S0+7}")
            e(f"v_cvt_pk_bf16_f32 v{PP+1}, v{S0+2}, v{S0+3}")
            e(f"v_add_f32 v{T2}, v{T2}, v{T1}")
            e(f"v_cvt_pk_bf16_f32 v{PP+2}, v{S0+4}, v{S0+5}")
            e(f"v_add_f32 v{T0}, v{T0}, v{T2}")
            e(f"v_cvt_pk_bf16_f32 v{PP+3}, v{S0+6}, v{S0+7}")
            e(f"v_add_f32 v{vL}, v{vL}, v{T0}")
            if steady: pf(2)
            e(f"s_waitcnt vmcnt({wv_})")
            if steady and split in (1, 2) and mode == "alt":
                issueV(slot, "s40", 4, 8)
                e("s_waitcnt vmcnt(0)")
            if steady: pf(3)
            after_v()
            if steady: pf(4)
            vb = VB[slot]
            def perms(j, ee, tb):
                sel = "s45" if (ee & 1) == 0 else "s46"
                for ip in range(4):
                    lo = vb + ((2 * ip) * 2 + j) * 4 + (ee >> 1)
                    hi = vb + ((2 * ip + 1) * 2 + j) * 4 + (ee >> 1)
                    e(f"v_perm_b32 v{tb+ip}, v{hi}, v{lo}, {sel}")
            seq = [(j, ee) for j in range(2) for ee in range(8)]
            perms(*seq[0], TT)
            for idx, (j, ee) in enumerate(seq):
                tb = TT + 4 * (idx % 3)
                if idx + 1 < len(seq):
                    perms(*seq[idx + 1], TT + 4 * ((idx + 1) % 3))
                else:
                    e("s_nop 1")
                a = ACC + (j * 8 + ee) * 4
                e(f"v_mfma_f32_16x16x32_bf16 v[{a}:{a+3}], v[{tb}:{tb+3}], v[{PP}:{PP+3}], v[{a}:{a+3}]")
            after_pv()
            if steady: pf(5)
        if mode == "alt":
            def av():
                if kind != "first0":
                    if win: prog_publish(u)
                    e(f"s_cmp_ge_u32 s41, {NT}")
                    e(f"s_cbranch_scc1 L_nok_{u}")
                    if win and steady: prog_gate(u)
                    e("s_lshl_b32 s40, s41, 14")
                    if split in (1, 3): issueK(slot ^ 1, "s40", 0, 8)
                    else: issueK(slot ^ 1, "s40")
                    if earlyv and not split:
                        e(f"s_cmp_ge_u32 s41, {earlyv}")
                        e("s_cselect_b32 s71, 1, 0")
                        e(f"s_cbranch_scc0 L_nok_{u}")
                        issueV(slot ^ 1, "s40")
                    e.label(f"L_nok_{u}")
            softmax_pv(u, wv, av, lambda: None)
            if kind != "first0":
                e(f"s_cmp_ge_u32 s41, {NT}")
                e("s_cbranch_scc1 L_u_done")
        else:
            if kind == "first0":
                softmax_pv(u, wv, lambda: None, lambda: None)
            else:
                softmax_pv(u, wv, lambda: None, lambda: issueV(slot ^ 1, "s40"))
                e(f"s_branch L_next_{u}")
                e.label(f"L_last_{u}")
                softmax_pv(f"{u}b", 0, lambda: None, lambda: None)
                e("s_branch L_u_done")
                e.label(f"L_next_{u}")

    e("s_mov_b32 s71, 0")
    e("s_waitcnt lgkmcnt(0)")
    step(0, "first0")
    step(1, "first1")
    if prof:
        for k in range(8): e(f"s_mov_b32 s{84+k}, 0")
        e("s_memtime s[64:65]")
        e("s_waitcnt lgkmcnt(0)")
        e("s_mov_b32 s67, s64")
    if steptime: e("s_mov_b32 s57, 0")
    e.label("L_u_loop")
    step(0, "steady")
    step(1, "steady")
    e("s_branch L_u_loop")
    e.label("L_u_done")
    stamp(3)
    if prof:
        for k in range(7): e(f"v_writelane_b32 v254, s{84+k}, {16+k}")
    if steptime:
        e("v_writelane_b32 v254, s57, 23")
        e(f"s_mov_b32 s68, {1 if nact <= 2 else 0}")
        e("v_writelane_b32 v254, s68, 15")
    e.c("---- every wave leaves (m, l) and its unscaled accumulators in LDS")
    if not flg:
        e("s_cmp_lg_u32 s3, 0")
        e("s_cbranch_scc1 L_u_noh")
        e(f"v_lshlrev_b32 v{vTINC}, 3, v1")
        e(f"s_add_u32 s58, s28, {WS_H}")
        e("s_addc_u32 s59, s29, 0")
        e(f"global_load_dwordx2 v[{T2}:{T3}], v{vTINC}, s[58:59] sc1")
        e.label("L_u_noh")
    e(f"v_mov_b32 v{T1}, v{vL}")
    e("s_nop 1")
    e(f"v_permlane16_swap_b32 v{T1}, v{vL}")
    e(f"v_add_f32 v{vL}, v{vL}, v{T1}")
    e(f"v_mov_b32 v{T1}, v{vL}")
    e("s_nop 1")
    e(f"v_permlane32_swap_b32 v{T1}, v{vL}")
    e(f"v_add_f32 v{vL}, v{vL}, v{T1}")
    e("v_and_b32 v2, 1, v1")
    e("v_lshlrev_b32 v3, 3, v2")
    e(f"v_add_u32 v3, {LDS_ST}, v3")
    e("s_lshl_b32 s41, s3, 4")
    e("v_add_u32 v3, s41, v3")
    e("v_lshlrev_b32 v2, 10, v2")
    e("v_lshrrev_b32 v23, 4, v1")
    e("v_lshl_add_u32 v2, v23, 7, v2")
    e("v_add_u32 v2, s43, v2")
    e("s_mov_b32 exec_lo, 0x00030003")
    e("s_mov_b32 exec_hi, 0x00030003")
    for j in range(2):
        for r in range(4):
            for ee in range(0, 8, 2):
                o0 = j * 128 + r * 8 + ee
                e(f"ds_write2_b32 v2, v{ACC + (j*8+ee)*4 + r}, v{ACC + (j*8+ee+1)*4 + r} offset0:{o0} offset1:{o0+1}")
    e("s_mov_b64 exec, 3")
    e(f"ds_write_b64 v3, v[{vM}:{vL}]")
    e("s_mov_b64 exec, -1")
    e("s_waitcnt lgkmcnt(0)")
    e("s_barrier")
    stamp(9)
    e("s_cmp_lg_u32 s3, 0")
    e("s_cbranch_scc1 L_u_exit")
    e("v_lshrrev_b32 v2, 5, v1")
    e("v_lshlrev_b32 v2, 3, v2")
    e(f"v_add_u32 v2, {LDS_ST}, v2")
    for w in range(4):
        e(f"ds_read_b64 v[{S0+2*w}:{S0+2*w+1}], v2 offset:{w*16}")
    e("v_lshlrev_b32 v2, 5, v1")
    e("v_add_u32 v3, 0x10000, v2")
    for w in range(4):
        vr = "v2" if w < 2 else "v3"
        e(f"ds_read_b128 v[{ACC+8*w}:{ACC+8*w+3}], {vr} offset:{(w&1)*32768}")
        e(f"ds_read_b128 v[{ACC+8*w+4}:{ACC+8*w+7}], {vr} offset:{(w&1)*32768+16}")
    e("s_waitcnt lgkmcnt(8)")
    e(f"v_max3_f32 v{T0}, v{S0}, v{S0+2}, v{S0+4}")
    e(f"v_max_f32 v{T0}, v{T0}, v{S0+6}")
    for w in range(4):
        e(f"v_sub_f32 v{S0+2*w}, v{S0+2*w}, v{T0}")
    for w in range(4):
        e(f"v_mul_f32 v{S0+2*w}, s44, v{S0+2*w}")
    for w in range(4):
        e(f"v_exp_f32 v{S0+2*w}, v{S0+2*w}")
    e("s_nop 0")
    e(f"v_mul_f32 v{T1}, v{S0}, v{S0+1}")
    e(f"v_fma_f32 v{T1}, v{S0+2}, v{S0+3}, v{T1}")
    e(f"v_fma_f32 v{T1}, v{S0+4}, v{S0+5}, v{T1}")
    e(f"v_fma_f32 v{T1}, v{S0+6}, v{S0+7}, v{T1}")
    e(f"v_rcp_f32 v{T1}, v{T1}")
    e("s_nop 0")
    for w in range(4):
        e(f"v_mul_f32 v{S0+2*w}, v{S0+2*w}, v{T1}")
    e("s_waitcnt lgkmcnt(0)")
    for i in range(8):
        e(f"v_mul_f32 v{ACC+i}, v{ACC+i}, v{S0}")
    for w in range(1, 4):
        for i in range(8):
            e(f"v_fma_f32 v{ACC+i}, v{ACC+8*w+i}, v{S0+2*w}, v{ACC+i}")
    for i in range(4):
        e(f"v_cvt_pk_bf16_f32 v{PP+i}, v{ACC+2*i}, v{ACC+2*i+1}")
    e("v_lshlrev_b32 v2, 4, v1")
    e("s_cmp_lg_u32 s52, 0")
    e("s_cbranch_scc1 L_u_storeA")
    e("s_mov_b32 exec_hi, 0")
    e.label("L_u_storeA")
    e(f"global_store_dwordx4 v2, v[{PP}:{PP+3}], s[50:51] sc1")
    e("s_mov_b64 exec, -1")
    if flg:
        e("s_cmp_lg_u32 s52, 0")
        e("s_cselect_b32 s41, 1, 2")
        e("s_cselect_b32 s47, 1, 3")
        e("s_cselect_b32 s54, 0, 4")
        e("s_cselect_b32 s55, 3, 4")
        e("s_lshr_b32 s41, s53, s41")
        e("s_add_u32 s41, s41, s54")
        e("s_lshl_b32 s41, s41, 8")
        e("s_and_b32 s47, s53, s47")
        e("s_lshl_b32 s47, s47, 6")
        e("s_add_u32 s41, s41, s47")
        e("s_sub_u32 s47, s2, 64")
        e("s_cmp_lg_u32 s52, 0")
        e("s_cselect_b32 s54, 0, 64")
        e("s_sub_u32 s47, s47, s54")
        e("s_lshr_b32 s47, s47, s55")
        e("s_lshl_b32 s47, s47, 3")
        e("s_add_u32 s41, s41, s47")
        e(f"s_add_u32 s41, s41, {WS_FL}")
        e("v_mov_b32 v2, s41")
        e(f"v_mov_b32 v{T2}, s30")
        e(f"v_mov_b32 v{T3}, s31")
        e("s_waitcnt vmcnt(0)")
        stamp(10)
        e("s_mov_b64 exec, 1")
        e(f"global_store_dwordx2 v2, v[{T2}:{T3}], s[28:29] sc1")
        e("s_mov_b64 exec, -1")
    else:
        e("s_cmp_lg_u32 s52, 0")
        e("s_cselect_b32 s41, 1, 2")
        e("s_cselect_b32 s47, 1, 3")
        e("s_cselect_b32 s54, 0, 4")
        e("s_lshr_b32 s41, s53, s41")
        e("s_add_u32 s41, s41, s54")
        e("s_lshl_b32 s41, s41, 7")
        e("s_and_b32 s47, s53, s47")
        e("s_lshl_b32 s47, s47, 2")
        e("s_add_u32 s41, s41, s47")
        e("v_lshlrev_b32 v2, 10, v1")
        e("v_add_u32 v2, s41, v2")
        e(f"s_mov_b32 s56, {spin}")
        e.label("L_u_hchk")
        e("s_waitcnt vmcnt(0)")
        e(f"v_cmp_eq_u32 vcc, s30, v{T2}")
        e(f"v_cmp_eq_u32 s[54:55], s31, v{T3}")
        e("s_nop 1")
        e("s_and_b64 s[54:55], s[54:55], vcc")
        e("s_cmp_eq_u64 s[54:55], -1")
        e("s_cbranch_scc1 L_u_sig")
        e(f"global_load_dwordx2 v[{T2}:{T3}], v{vTINC}, s[58:59] sc1")
        e("s_sub_u32 s56, s56, 1")
        e("s_cmp_lg_u32 s56, 0")
        e("s_cbranch_scc1 L_u_hchk")
        e.label("L_u_sig")
        stamp(10)
        e(f"s_add_u32 s58, s28, {WS_REP}")
        e("s_addc_u32 s59, s29, 0")
        e(f"s_mov_b64 exec, {(1 << nrep) - 1}")
        e(f"global_atomic_add v2, v{vONE}, s[58:59] sc1")
        e("s_mov_b64 exec, -1")
    e.label("L_u_exit")
    if clk:
        e("s_cmp_lg_u32 s3, 0")
        e("s_cbranch_scc1 L_clk")
        e("s_sub_u32 s61, s2, 128")
        e("s_cmp_ge_u32 s61, 8")
        e("s_cbranch_scc1 L_clk")
        e("s_memtime s[88:89]")
        e("s_memrealtime s[90:91]")
        e("s_waitcnt lgkmcnt(0)")
        e("s_sub_u32 s88, s88, s84")
        e("s_sub_u32 s90, s90, s86")
        e("s_lshl_b32 s61, s61, 3")
        e("v_mov_b32 v250, s88")
        e("v_mov_b32 v251, s90")
        e("v_mov_b32 v252, s61")
        e("s_mov_b64 exec, 1")
        e("global_store_dwordx2 v252, v[250:251], s[26:27] sc1")
        e("s_mov_b64 exec, -1")
        e.label("L_clk")
    dstamp(4, 128, 8)
    stamp(4)
    stamp_flush()
    e("s_endpgm")

    WB, QA = 112, 48
    e.label("L_helper0")
    if jit == 1:
        e("s_cmp_ge_u32 s2, 8")
        e("s_cbranch_scc1 L_jit1")
        for _ in range(12): e("s_sleep 127")
        e.label("L_jit1")
    e.c("---- wave 0 of a helper: say that the epoch word has been read")
    if not flg:
        e("s_lshl_b32 s47, s2, 7")
        e(f"s_add_u32 s47, s47, {WS_REP}")
        e("s_add_u32 s58, s28, s47")
        e("s_addc_u32 s59, s29, 0")
        e(f"s_cmp_ge_u32 s2, {8 * nrep}")
        e("s_cbranch_scc1 L_h_nozero")
        e("v_and_b32 v6, 31, v1")
        e("v_lshlrev_b32 v6, 2, v6")
        e("v_mov_b32 v7, 0")
        e("global_store_dword v6, v7, s[58:59] sc1")
        e.label("L_h_nozero")
        e("s_waitcnt vmcnt(0)")
    e("s_lshl_b32 s47, s2, 3")
    e(f"s_add_u32 s47, s47, {WS_H}")
    e("v_mov_b32 v6, s47")
    e("s_mov_b64 exec, 1")
    e("global_store_dwordx2 v6, v[38:39], s[28:29] sc1")
    e("s_mov_b64 exec, -1")
    e(f"v_mov_b32 v6, {LDS_RED + 2048}")
    e("ds_write_b64 v6, v[38:39]")
    e("s_waitcnt lgkmcnt(0)")
    if prio: e("s_setprio 0")
    stamp(2)
    e("s_branch L_h_join")
    e.label("L_h_join0")
    if codepf:
        e("s_getpc_b64 s[40:41]")
        e.label("L_pc")
        e(f"s_add_u32 s40, s40, {KN}-L_pc")
        e("s_addc_u32 s41, s41, -1")
        e("s_sub_u32 s42, s3, 1")
        e("s_lshl_b32 s42, s42, 10")
        e("v_lshlrev_b32 v2, 4, v1")
        e("v_add_u32 v2, s42, v2")
        e(f"s_mov_b32 s42, (L_end-{KN})/3072")
        e.label("L_pf")
        e("global_load_dwordx4 v[200:203], v2, s[40:41]")
        e("v_add_u32 v2, 3072, v2")
        e("s_sub_u32 s42, s42, 1")
        e("s_cmp_lg_u32 s42, 0")
        e("s_cbranch_scc1 L_pf")
    if qfirst: e("s_barrier")
    e.label("L_h_join")
    e("s_barrier")
    if womap:
        e("s_lshr_b32 s53, s2, 3")
        e("s_and_b32 s52, s2, 7")
        e("s_lshr_b32 s47, s53, 2")
        e("s_lshl_b32 s54, s52, 1")
        e("s_add_u32 s54, s54, s47")
        e("s_add_u32 s55, s52, 6")
        e("s_cmp_ge_u32 s52, 6")
        e("s_cselect_b32 s54, s55, s54")
        e("s_cselect_b32 s47, s47, 0")
        e("s_cmp_lg_u32 s47, 0")
        e("s_cbranch_scc1 L_h_keeper")
        e("s_cmp_ge_u32 s54, 7")
        e("s_cselect_b32 s40, 1, 0")
        e("s_cselect_b32 s47, 7, 0")
        e("s_sub_u32 s54, s54, s47")
        e("s_lshl_b32 s54, s54, 2")
        e("s_and_b32 s47, s53, 3")
        e("s_add_u32 s41, s54, s47")
    else:
        e("s_lshr_b32 s53, s2, 3")
        e("s_and_b32 s52, s2, 7")
        e("s_mul_i32 s52, s52, 7")
        e("s_add_u32 s52, s52, s53")
        e("s_cmp_eq_u32 s53, 7")
        e("s_cbranch_scc1 L_h_keeper")
        e("s_cmp_ge_u32 s52, 28")
        e("s_cselect_b32 s40, 1, 0")
        e("s_cselect_b32 s47, 28, 0")
        e("s_sub_u32 s41, s52, s47")
    if not flg:
        e(f"s_and_b32 s47, s41, {nrep - 1}")
        e("s_lshl_b32 s47, s47, 3")
        e("s_lshl_b32 s58, s40, 2")
        e("s_add_u32 s47, s47, s58")
        e("s_add_u32 s47, s47, s3")
        e("s_lshl_b32 s47, s47, 7")
        e(f"s_add_u32 s47, s47, {WS_REP}")
        e("s_add_u32 s58, s28, s47")
        e("s_addc_u32 s59, s29, 0")
    e("s_cmp_eq_u32 s40, 0")
    e("s_cselect_b32 s36, s12, s22")
    e("s_cselect_b32 s37, s13, s23")
    e("s_and_b32 s37, s37, 0xffff")
    e("s_mov_b32 s38, 3670016")
    e("s_mov_b32 s39, 0x20000")
    e("v_lshrrev_b32 v2, 4, v1")
    e("v_and_b32 v3, 15, v1")
    e("v_lshrrev_b32 v6, 1, v1")
    e("v_mul_u32_u24 v6, 896, v6")
    e("v_and_b32 v7, 1, v1")
    e("v_lshl_add_u32 v6, v7, 4, v6")
    e("s_mul_i32 s42, s3, 917504")
    e("s_lshl_b32 s47, s41, 5")
    e("s_add_u32 s42, s42, s47")
    e("s_lshl_b32 s43, s3, 15")
    def wo_fetch(lo, hi):
        for n in range(lo, hi):
            e(f"s_add_u32 s47, s42, {n*32*896}")
            e(f"s_add_u32 m0, s43, {n*1024}")
            e("s_nop 0")
            e(f"buffer_load_dwordx4 v6, s[36:39], s47 offen {woflags} lds")
        e("s_waitcnt vmcnt(0)")
        stamp(3)
        for ks in range(lo, hi):
            e(f"ds_read_b64_tr_b16 a[{4*ks}:{4*ks+1}], v7 offset:{ks*1024}")
            e(f"ds_read_b64_tr_b16 a[{4*ks+2}:{4*ks+3}], v7 offset:{ks*1024+128}")
            if ks % 4 == 3:
                e("s_waitcnt lgkmcnt(0)")
        e("s_waitcnt lgkmcnt(0)")
    e("v_lshrrev_b32 v7, 2, v3")
    e("v_lshlrev_b32 v7, 5, v7")
    e("v_and_b32 v8, 3, v3")
    e("v_lshl_add_u32 v7, v8, 3, v7")
    e("v_lshl_add_u32 v7, v2, 8, v7")
    e("v_add_u32 v7, s43, v7")
    if not wolate: wo_fetch(0, 32)
    elif woearly: wo_fetch(0, woearly)
    e("v_and_b32 v9, 3, v1")
    e("v_lshlrev_b32 v9, 2, v9")
    e("s_lshl_b32 s47, s40, 16")
    e(f"s_add_u32 s47, s47, {WS_O}")
    e("s_add_u32 s48, s28, s47")
    e("s_addc_u32 s49, s29, 0")
    e("v_and_b32 v10, 7, v1")
    e("v_lshlrev_b32 v10, 13, v10")
    e("v_lshl_add_u32 v10, v2, 4, v10")
    e("s_lshl_b32 s47, s3, 11")
    e("v_add_u32 v10, s47, v10")
    for hh in range(4):
        e("s_cmp_eq_u32 s40, 0")
        e(f"s_cselect_b32 s{72+hh}, {hh >> 1}, {hh}")
    if flg:
        e(f"v_mov_b32 v12, {LDS_RED + 2048}")
        e("ds_read_b64 v[14:15], v12")
        e("s_lshl_b32 s47, s40, 2")
        e("s_add_u32 s47, s47, s3")
        e("s_lshl_b32 s47, s47, 8")
        e(f"s_add_u32 s47, s47, {WS_FL}")
        e("v_and_b32 v9, 31, v1")
        e("v_lshlrev_b32 v9, 3, v9")
        e("v_add_u32 v9, s47, v9")
        e("s_waitcnt lgkmcnt(0)")
        e("v_readfirstlane_b32 s30, v14")
        e("v_readfirstlane_b32 s31, v15")
        for hh in range(4):
            e(f"s_mov_b32 s68, {0xff << (8*(hh >> 1))}")
            e("s_cmp_eq_u32 s40, 0")
            e(f"s_cselect_b32 s{72+hh}, s68, {0xff << (8*hh)}")
        def fl_load():
            e("global_load_dwordx2 v[16:17], v9, s[28:29] sc1")
            e("s_waitcnt vmcnt(0)")
            e("v_cmp_eq_u32 vcc, s30, v16")
            e("v_cmp_eq_u32 s[54:55], s31, v17")
            e("s_nop 1")
            e("s_and_b32 s68, s54, vcc_lo")
        if wolate:
            e(f"s_mov_b32 s56, {spin}")
            e.label("L_h_first")
            fl_load()
            e("s_cmp_lg_u32 s68, 0")
            e("s_cbranch_scc1 L_h_first_ok")
            e(f"s_sleep {sleep_o}")
            e("s_sub_u32 s56, s56, 1")
            e("s_cmp_lg_u32 s56, 0")
            e("s_cbranch_scc1 L_h_first")
            e.label("L_h_first_ok")
            wo_fetch(woearly, 32)
        e("s_mov_b32 s57, 15")
        e(f"s_mov_b32 s56, {spin}")
        e.label("L_h_poll")
        fl_load()
        for hh in range(4):
            e(f"s_bitcmp1_b32 s57, {hh}")
            e(f"s_cbranch_scc0 L_h_skip{hh}")
            e(f"s_and_b32 s69, s68, s{72+hh}")
            e(f"s_cmp_lg_u32 s69, s{72+hh}")
            e(f"s_cbranch_scc1 L_h_skip{hh}")
            e(f"s_bitset0_b32 s57, {hh}")
            e("s_mov_b32 exec_lo, 0x00ff00ff")
            e("s_mov_b32 exec_hi, 0x00ff00ff")
            for ks in range(8 * hh, 8 * hh + 8):
                r = WB + 4 * ks
                e(f"global_load_dwordx4 v[{r}:{r+3}], v10, s[48:49] offset:{ks*64} sc1")
            e("s_mov_b64 exec, -1")
            e.label(f"L_h_skip{hh}")
        e("s_cmp_eq_u32 s57, 0")
        e("s_cbranch_scc1 L_h_ready")
        if sleep_o: e(f"s_sleep {sleep_o}")
        e("s_sub_u32 s56, s56, 1")
        e("s_cmp_lg_u32 s56, 0")
        e("s_cbranch_scc1 L_h_poll")
    else:
        e(f"v_mov_b32 v12, {LDS_RED + 2048}")
        e("ds_read_b64 v[14:15], v12")
        e("s_sub_u32 s47, s58, s28")
        e(f"s_sub_u32 s47, s47, {WS_REP}")
        e("s_lshr_b32 s47, s47, 4")
        e(f"s_add_u32 s47, s47, {WS_H}")
        e("v_mov_b32 v12, s47")
        e(f"s_mov_b32 s56, {spin}")
        e.label("L_h_hw")
        e("global_load_dwordx2 v[16:17], v12, s[28:29] sc1")
        e("s_waitcnt vmcnt(0) lgkmcnt(0)")
        e("v_cmp_eq_u32 vcc, v14, v16")
        e("v_cmp_eq_u32 s[54:55], v15, v17")
        e("s_nop 1")
        e("s_and_b64 s[54:55], s[54:55], vcc")
        e("s_cmp_eq_u64 s[54:55], -1")
        e("s_cbranch_scc1 L_h_hok")
        e("s_sleep 4")
        e("s_sub_u32 s56, s56, 1")
        e("s_cmp_lg_u32 s56, 0")
        e("s_cbranch_scc1 L_h_hw")
        e.label("L_h_hok")
        if wolate:
            e(f"s_mov_b32 s56, {spin}")
            e.label("L_h_first")
            e("global_load_dword v11, v9, s[58:59] sc1")
            e("s_waitcnt vmcnt(0)")
            e(f"v_cmp_le_u32 vcc, {wolate}, v11")
            e("s_cbranch_vccnz L_h_first_ok")
            e(f"s_sleep {sleep_o}")
            e("s_sub_u32 s56, s56, 1")
            e("s_cmp_lg_u32 s56, 0")
            e("s_cbranch_scc1 L_h_first")
            e.label("L_h_first_ok")
            wo_fetch(woearly, 32)
        e("s_mov_b32 s57, 15")
        e(f"s_mov_b32 s56, {spin}")
        e.label("L_h_poll")
        e("global_load_dword v11, v9, s[58:59] sc1")
        e("s_waitcnt vmcnt(0)")
        for hh in range(4):
            e(f"s_bitcmp1_b32 s57, {hh}")
            e(f"s_cbranch_scc0 L_h_skip{hh}")
            e(f"v_readlane_b32 s68, v11, s{72+hh}")
            e("s_nop 3")
            e("s_cmp_lt_u32 s68, 8")
            e(f"s_cbranch_scc1 L_h_skip{hh}")
            e(f"s_bitset0_b32 s57, {hh}")
            e("s_mov_b32 exec_lo, 0x00ff00ff")
            e("s_mov_b32 exec_hi, 0x00ff00ff")
            for ks in range(8 * hh, 8 * hh + 8):
                r = WB + 4 * ks
                e(f"global_load_dwordx4 v[{r}:{r+3}], v10, s[48:49] offset:{ks*64} sc1")
            e("s_mov_b64 exec, -1")
            e.label(f"L_h_skip{hh}")
        e("s_cmp_eq_u32 s57, 0")
        e("s_cbranch_scc1 L_h_ready")
        if sleep_o: e(f"s_sleep {sleep_o}")
        e("s_sub_u32 s56, s56, 1")
        e("s_cmp_lg_u32 s56, 0")
        e("s_cbranch_scc1 L_h_poll")
    e.label("L_h_ready")
    stamp(4)
    e("s_waitcnt vmcnt(0)")
    stamp(11)
    for ks in range(32):
        r = WB + 4 * ks
        a = QA + 4 * (ks % 4)
        c_ = "0" if ks < 4 else f"v[{a}:{a+3}]"
        e(f"v_mfma_f32_16x16x32_bf16 v[{a}:{a+3}], v[{r}:{r+3}], a[{4*ks}:{4*ks+3}], {c_}")
    e("v_lshlrev_b32 v6, 8, v2")
    e("v_lshl_add_u32 v6, v3, 2, v6")
    e("s_lshl_b32 s47, s3, 9")
    e(f"s_add_u32 s47, s47, {LDS_RED}")
    e("v_add_u32 v6, s47, v6")
    e("s_nop 7")
    for i in range(4):
        e(f"v_add_f32 v{QA+i}, v{QA+i}, v{QA+4+i}")
        e(f"v_add_f32 v{QA+8+i}, v{QA+8+i}, v{QA+12+i}")
    for i in range(4):
        e(f"v_add_f32 v{QA+i}, v{QA+i}, v{QA+8+i}")
    e("s_mov_b32 exec_hi, 0")
    for r in range(4):
        e(f"ds_write_b32 v6, v{QA+r} offset:{r*64}")
    e("s_mov_b64 exec, -1")
    e("s_waitcnt lgkmcnt(0)")
    e("s_barrier")
    e("s_cmp_lg_u32 s3, 0")
    e("s_cbranch_scc1 L_h_exit")
    e("v_lshlrev_b32 v6, 3, v1")
    e(f"v_add_u32 v6, {LDS_RED}, v6")
    for w in range(4):
        e(f"ds_read_b64 v[{QA+2*w}:{QA+2*w+1}], v6 offset:{w*512}")
    e("v_lshrrev_b32 v6, 3, v1")
    e("v_mul_u32_u24 v6, 1792, v6")
    e("v_and_b32 v7, 7, v1")
    e("v_lshl_add_u32 v6, v7, 2, v6")
    e("s_mul_i32 s47, s40, 896")
    e("s_lshl_b32 s48, s41, 5")
    e("s_add_u32 s47, s47, s48")
    e("v_add_u32 v6, s47, v6")
    e("s_waitcnt lgkmcnt(0)")
    e(f"v_add_f32 v{QA}, v{QA}, v{QA+2}")
    e(f"v_add_f32 v{QA+1}, v{QA+1}, v{QA+3}")
    e(f"v_add_f32 v{QA+4}, v{QA+4}, v{QA+6}")
    e(f"v_add_f32 v{QA+5}, v{QA+5}, v{QA+7}")
    e(f"v_add_f32 v{QA}, v{QA}, v{QA+4}")
    e(f"v_add_f32 v{QA+1}, v{QA+1}, v{QA+5}")
    e(f"v_cvt_pk_bf16_f32 v{QA}, v{QA}, v{QA+1}")
    e(f"global_store_dword v6, v{QA}, s[24:25] {outflags}")
    e("s_branch L_h_exit")

    e.label("L_h_keeper")
    e.c("---- wg 56, wave 0: once every unit and helper is past its use of the epoch word, advance it")
    e(f"s_cmp_lg_u32 s2, {62 if womap else 56}")
    e("s_cbranch_scc1 L_h_exit")
    e("s_cmp_lg_u32 s3, 0")
    e("s_cbranch_scc1 L_h_exit")
    e("v_min_u32 v2, 23, v1")
    e("v_cmp_gt_u32 vcc, 8, v2")
    e("v_lshrrev_b32 v3, 1, v2")
    e("v_lshlrev_b32 v3, 7, v3")
    e("v_and_b32 v4, 1, v2")
    e("v_lshl_add_u32 v3, v4, 2, v3")
    e("v_subrev_u32 v4, 8, v2")
    e("v_lshrrev_b32 v5, 2, v4")
    e("v_add_u32 v5, 4, v5")
    e("v_lshlrev_b32 v5, 7, v5")
    e("v_and_b32 v4, 3, v4")
    e("v_lshl_add_u32 v4, v4, 2, v5")
    e("v_cndmask_b32 v3, v4, v3, vcc")
    e(f"v_add_u32 v3, {WS_REP}, v3")
    e("v_lshlrev_b32 v4, 3, v1")
    e(f"v_add_u32 v4, {WS_H}, v4")
    e(f"s_mov_b32 s56, {spin}")
    e.label("L_k_h")
    e("global_load_dwordx2 v[6:7], v4, s[28:29] sc1")
    e("s_waitcnt vmcnt(0)")
    e("v_cmp_eq_u32 s[54:55], s30, v6")
    e("v_cmp_eq_u32 s[68:69], s31, v7")
    e("s_nop 1")
    e("s_and_b64 s[54:55], s[54:55], s[68:69]")
    e("s_cmp_eq_u64 s[54:55], -1")
    e("s_cbranch_scc1 L_k_h2")
    e("s_sleep 8")
    e("s_sub_u32 s56, s56, 1")
    e("s_cmp_lg_u32 s56, 0")
    e("s_cbranch_scc1 L_k_h")
    e.label("L_k_h2")
    e(f"s_mov_b32 s56, {spin}")
    if flg:
        e("v_lshlrev_b32 v3, 3, v1")
        e(f"v_add_u32 v3, {WS_FL}, v3")
        e("v_and_b32 v5, 16, v1")
        e("v_cmp_ne_u32 s[70:71], 0, v5")
        e.label("L_k_poll")
        for j in range(4):
            e(f"global_load_dwordx2 v[{8+2*j}:{9+2*j}], v3, s[28:29] offset:{j*512} sc1")
        e("s_waitcnt vmcnt(0)")
        e("s_mov_b64 s[68:69], -1")
        for j in range(4):
            e(f"v_cmp_eq_u32 vcc, s30, v{8+2*j}")
            e(f"v_cmp_eq_u32 s[54:55], s31, v{9+2*j}")
            e("s_nop 1")
            e("s_and_b64 s[54:55], s[54:55], vcc")
            if j < 2: e("s_or_b64 s[54:55], s[54:55], s[70:71]")
            e("s_and_b64 s[68:69], s[68:69], s[54:55]")
        e("s_cmp_eq_u64 s[68:69], -1")
        e("s_cbranch_scc1 L_k_done")
        e("s_sleep 8")
        e("s_sub_u32 s56, s56, 1")
        e("s_cmp_lg_u32 s56, 0")
        e("s_cbranch_scc1 L_k_poll")
    else:
        e.label("L_k_poll")
        e("global_load_dword v5, v3, s[28:29] sc1")
        e("s_waitcnt vmcnt(0)")
        e("v_cmp_gt_u32 vcc, 8, v5")
        e("s_cbranch_vccz L_k_done")
        e("s_sleep 8")
        e("s_sub_u32 s56, s56, 1")
        e("s_cmp_lg_u32 s56, 0")
        e("s_cbranch_scc1 L_k_poll")
    e.label("L_k_done")
    e("v_mov_b32 v2, 0")
    e("v_mov_b32 v6, s30")
    e("v_mov_b32 v7, s31")
    e("s_mov_b64 exec, 1")
    e(f"global_store_dwordx2 v2, v[6:7], s[28:29] offset:{WS_EPOCH} sc1")
    e("s_mov_b64 exec, -1")
    e.label("L_h_exit")
    dstamp(1, 0)
    dstamp(2, 30)
    dstamp(3, 17)
    stamp(5)
    stamp_flush()
    e.label("L_end")
    e("s_endpgm")
    e.l.append('.section .rodata,"a"')
    e.l.append(".p2align 6")
    e.l.append(f".amdhsa_kernel {KN}")
    e.l.append("  .amdhsa_next_free_vgpr 384")
    e.l.append("  .amdhsa_next_free_sgpr 96")
    e.l.append("  .amdhsa_accum_offset 256")
    e.l.append("  .amdhsa_group_segment_fixed_size 0")
    e.l.append("  .amdhsa_kernarg_size 104")
    e.l.append("  .amdhsa_user_sgpr_count 2")
    e.l.append("  .amdhsa_user_sgpr_kernarg_segment_ptr 1")
    e.l.append("  .amdhsa_system_sgpr_workgroup_id_x 1")
    e.l.append(".end_amdhsa_kernel")
    return "\n".join(e.l) + "\n"

if __name__ == "__main__":
    kw = dict(a.split("=") for a in sys.argv[2:])
    for k in kw:
        try: kw[k] = int(kw[k])
        except: kw[k] = kw[k].replace("+", " ")
    for k in list(kw):
        if kw[k] == "none": kw[k] = ""
    open(sys.argv[1], "w").write(gen(**kw))
```
